```python
import torch

def _softmax(x, axis=-1):
    return torch.softmax(x, dim=axis)
def _gelu(x):
    return torch.nn.functional.gelu(x, approximate="tanh")
def _silu(x):
    return torch.nn.functional.silu(x)
def _sigmoid(x):
    return torch.sigmoid(x)
def _layernorm(x, axis=-1, eps=1e-5):
    m = x.mean(dim=axis, keepdim=True)
    v = x.var(dim=axis, keepdim=True, unbiased=False)
    return (x - m) / torch.sqrt(v + eps)
def _scatter_add(tgt, idx, src, axis=0):
    return tgt.clone().index_add_(axis, idx, src)
def _segment_sum(src, seg, n):
    out = torch.zeros((n,) + src.shape[1:], dtype=src.dtype)
    return out.index_add_(0, seg, src)
def _pad(x, pw):
    flat = tuple(v for pair in reversed(pw) for v in pair)
    return torch.nn.functional.pad(x, flat)

kernel_name = 'standalone__glu_gated_swiglu__sampling'

def setup_inputs():

    _w = (lambda a: (lambda t: t.to(torch.bfloat16) if t.is_floating_point() else t)(torch.as_tensor(a)))
    B, S, D, F = 16, 4, 1024, 3584
    return {
        "x": _w((lambda *s: torch.randn(*s, dtype=torch.bfloat16) * 0.05)(B, S, D)),
        "w1": _w((lambda *s: torch.randn(*s, dtype=torch.bfloat16) * 0.05)(D, F) * (2.0 / D) ** 0.5),
        "w3": _w((lambda *s: torch.randn(*s, dtype=torch.bfloat16) * 0.05)(D, F) * (2.0 / D) ** 0.5),
        "w2": _w((lambda *s: torch.randn(*s, dtype=torch.bfloat16) * 0.05)(F, D) * (2.0 / F) ** 0.5),
    }

def reference(x, w1, w3, w2):
    gate = torch.einsum("bsd,df->bsf", x, w1)
    up = torch.einsum("bsd,df->bsf", x, w3)
    h = _silu(gate) * up
    out = torch.einsum("bsf,fd->bsd", h, w2)
    return out
```

```python
import sys
opt = dict(diag=0, nt13=0, nt2=0, w2early=0, sleep=1, chunks="4,4,4,2,2", mimic=0)
out = None
for a in sys.argv[1:]:
    if '=' in a:
        k, v = a.split('='); opt[k] = v if k == 'chunks' else int(v)
    else: out = a
NAME = "standalone__glu_gated_swiglu__sampling"
L = []
def e(s): L.append("    " + s)
def lab(s): L.append(s + ":")
chunks = [int(c) for c in opt['chunks'].split(',')]
assert sum(chunks) == 16 and chunks[0] >= 4
HOFF = 0
POFF = 0x80000
DOFF = 0x800000
WSSZ = 0x1000000
sX, sW, sW2, sO, sD, sWS = 8, 12, 16, 20, 24, 28
sJ, sI, sMI, sT, sWV, sMB, sKI = 32, 33, 34, 35, 36, 37, 38
sOff, sM0, sTmp, sTmp2, sCnt, sLB, sW2o = 39, 40, 41, 42, 43, 44, 45
sST = 64
vL, vWo, vXo, vRA0, vRA1, vHs, vPs, vW2o, vT0, vT1, vS = 0, 1, 2, 3, 4, 5, 6, 7, 8, 9, 12
vR2, vR2x, vFl, vHo, vSc = 10, 11, 16, 17, 18
vACC = 20
vB = 36
vX = 68
vB2 = 68
vH = 180
vA2 = 208
vTmp = 224
nst = [0]
def stamp():
    if opt['diag']:
        e(f"s_memrealtime s[{sST+2*nst[0]}:{sST+2*nst[0]+1}]"); nst[0] += 1
def srd(d, lo, size):
    e(f"s_mov_b32 s{d}, s{lo}"); e(f"s_and_b32 s{d+1}, s{lo+1}, 0xffff")
    e(f"s_mov_b32 s{d+2}, {size}"); e(f"s_mov_b32 s{d+3}, 0x20000")
nt13 = " nt" if opt['nt13'] else ""
nt2 = " nt" if opt['nt2'] else ""

e("s_cmp_ge_u32 s2, 256"); e("s_cbranch_scc1 L_end")
e("s_load_dwordx8 s[48:55], s[0:1], 0")
e("s_load_dwordx4 s[56:59], s[0:1], 32")
e("s_load_dwordx2 s[60:61], s[0:1], 48")
stamp()
e(f"v_lshrrev_b32 v{vT0}, 6, v0"); e(f"v_and_b32 v{vL}, 63, v0")
e(f"v_readfirstlane_b32 s{sWV}, v{vT0}")
e(f"s_and_b32 s{sJ}, s2, 7"); e(f"s_lshr_b32 s{sI}, s2, 3")
e(f"s_and_b32 s{sMI}, s{sI}, 1"); e(f"s_lshr_b32 s{sT}, s{sI}, 1")
e(f"s_and_b32 s{sMB}, s{sWV}, 1"); e(f"s_lshr_b32 s{sKI}, s{sWV}, 1")
e(f"s_mul_i32 s{sLB}, s{sKI}, 81920")
e(f"v_lshrrev_b32 v{vT0}, 2, v{vL}"); e(f"v_mul_u32_u24 v{vWo}, 7168, v{vT0}")
e(f"v_lshrrev_b32 v{vT0}, 4, v{vL}"); e(f"v_and_b32 v{vT0}, 2, v{vT0}")
e(f"v_and_b32 v{vT1}, 3, v{vL}"); e(f"v_xor_b32 v{vT0}, v{vT0}, v{vT1}")
e(f"v_lshl_add_u32 v{vWo}, v{vT0}, 4, v{vWo}")
e(f"s_mul_i32 s{sTmp}, s{sJ}, 14"); e(f"s_add_u32 s{sTmp}, s{sTmp}, s{sT}")
e(f"s_lshl_b32 s{sOff}, s{sTmp}, 6"); e(f"s_mul_i32 s{sTmp2}, s{sKI}, {512*7168}")
e(f"s_add_u32 s{sOff}, s{sOff}, s{sTmp2}")
e(f"s_lshl_b32 s{sM0}, s{sMB}, 15"); e(f"s_add_u32 s{sM0}, s{sM0}, s{sLB}")
e(f"s_lshl_b32 s{sTmp2}, s{sMI}, 1"); e(f"s_add_u32 s{sTmp2}, s{sTmp2}, s{sMB}")
e(f"s_mul_i32 s{sCnt}, s{sTmp2}, 112"); e(f"s_add_u32 s{sTmp}, s{sTmp}, s{sCnt}")
e(f"s_lshl_b32 s{sTmp}, s{sTmp}, 1"); e(f"s_add_u32 s{sTmp}, s{sTmp}, s{sKI}"); e(f"s_lshl_b32 s{sTmp}, s{sTmp}, 9")
e(f"v_and_b32 v{vT0}, 31, v{vL}"); e(f"v_lshl_add_u32 v{vHs}, v{vT0}, 4, s{sTmp}")
e(f"s_mul_i32 s{sTmp}, s{sJ}, 14"); e(f"s_add_u32 s{sCnt}, s{sCnt}, s{sTmp}")
e(f"s_mul_i32 s{sTmp}, s{sKI}, 7"); e(f"s_add_u32 s{sCnt}, s{sCnt}, s{sTmp}"); e(f"s_lshl_b32 s{sCnt}, s{sCnt}, 10")
e(f"v_lshl_add_u32 v{vHo}, v{vL}, 4, s{sCnt}")
e(f"s_lshl_b32 s{sTmp2}, s{sTmp2}, 15"); e(f"s_lshl_b32 s{sTmp}, s{sKI}, 10"); e(f"s_add_u32 s{sTmp2}, s{sTmp2}, s{sTmp}")
e(f"v_and_b32 v{vT0}, 15, v{vL}"); e(f"v_lshl_add_u32 v{vXo}, v{vT0}, 11, s{sTmp2}")
e(f"v_and_b32 v{vT1}, 48, v{vL}"); e(f"v_add_u32 v{vXo}, v{vXo}, v{vT1}")
e(f"s_lshl_b32 s{sTmp}, s{sI}, 3"); e(f"s_lshl_b32 s{sTmp2}, s{sMB}, 2"); e(f"s_add_u32 s{sTmp}, s{sTmp}, s{sTmp2}")
e(f"s_lshl_b32 s{sTmp2}, s{sKI}, 1"); e(f"s_add_u32 s{sTmp}, s{sTmp}, s{sTmp2}")
e(f"s_lshl_b32 s{sTmp}, s{sTmp}, 3"); e(f"s_add_u32 s{sTmp}, s{sTmp}, s{sJ}"); e(f"s_lshl_b32 s{sTmp}, s{sTmp}, 10")
e(f"s_add_u32 s{sTmp}, s{sTmp}, {POFF}")
e(f"v_lshl_add_u32 v{vPs}, v{vL}, 4, s{sTmp}")
for r in range(4): e(f"v_mov_b32 v{vS+r}, -1")
e("s_waitcnt lgkmcnt(0)")
stamp()
srd(sWS, 60, WSSZ)
e(f"s_cmp_eq_u32 s{sMB}, 0"); e("s_cselect_b32 s46, s50, s52"); e("s_cselect_b32 s47, s51, s53")
srd(sW, 46, 7340032)
srd(sX, 48, 131072)
e(f"s_movk_i32 s{sTmp}, 0x2000")
e(f"buffer_store_dwordx4 v[{vS}:{vS+3}], v{vPs}, s[{sWS}:{sWS+3}], 0 offen sc1")
e(f"buffer_store_dwordx4 v[{vS}:{vS+3}], v{vPs}, s[{sWS}:{sWS+3}], s{sTmp} offen sc1")
e(f"s_cmp_ge_u32 s{sI}, 28"); e("s_cbranch_scc1 L_nop1")
e(f"buffer_store_dwordx4 v[{vS}:{vS+3}], v{vHs}, s[{sWS}:{sWS+3}], 0 offen sc1")
q = []
def w13(n):
    e(f"s_mov_b32 m0, s{sM0}"); e(f"s_add_u32 s{sM0}, s{sM0}, 1024")
    e(f"buffer_load_dwordx4 v{vWo}, s[{sW}:{sW+3}], s{sOff} offen{nt13} lds")
    e(f"s_add_u32 s{sOff}, s{sOff}, {16*7168}")
def setup2():
    srd(sW2, 54, 7340032); srd(sO, 56, 131072); srd(sD, 58, 256)
    e(f"v_lshrrev_b32 v{vT0}, 3, v{vL}"); e(f"v_lshlrev_b32 v{vW2o}, 11, v{vT0}")
    e(f"v_and_b32 v{vT0}, 6, v{vT0}"); e(f"v_and_b32 v{vT1}, 7, v{vL}"); e(f"v_xor_b32 v{vT0}, v{vT0}, v{vT1}")
    e(f"v_lshl_add_u32 v{vW2o}, v{vT0}, 4, v{vW2o}")
    e(f"s_mul_i32 s{sW2o}, s{sJ}, 448"); e(f"s_mul_i32 s{sTmp}, s{sKI}, 224"); e(f"s_add_u32 s{sW2o}, s{sW2o}, s{sTmp}")
    e(f"s_lshl_b32 s{sTmp}, s{sMB}, 4"); e(f"s_add_u32 s{sW2o}, s{sW2o}, s{sTmp}"); e(f"s_lshl_b32 s{sW2o}, s{sW2o}, 11")
    e(f"s_lshl_b32 s{sTmp}, s{sT}, 7"); e(f"s_add_u32 s{sW2o}, s{sW2o}, s{sTmp}")
    e(f"v_lshrrev_b32 v{vT0}, 4, v{vL}"); e(f"v_lshlrev_b32 v{vRA0}, 9, v{vT0}")
    e(f"v_and_b32 v{vT0}, 1, v{vT0}"); e(f"v_lshl_add_u32 v{vRA0}, v{vT0}, 5, v{vRA0}")
    e(f"v_and_b32 v{vT0}, 12, v{vL}"); e(f"v_lshl_add_u32 v{vRA0}, v{vT0}, 4, v{vRA0}")
    e(f"v_and_b32 v{vT1}, 3, v{vL}"); e(f"v_lshl_add_u32 v{vRA0}, v{vT1}, 3, v{vRA0}")
    e(f"v_add_u32 v{vRA0}, s{sLB}, v{vRA0}"); e(f"v_xor_b32 v{vRA1}, 32, v{vRA0}")
    e(f"v_lshrrev_b32 v{vT0}, 2, v{vL}"); e(f"v_lshlrev_b32 v{vR2}, 7, v{vT0}")
    e(f"v_and_b32 v{vT0}, 6, v{vT0}"); e(f"v_lshl_add_u32 v{vR2}, v{vT0}, 4, v{vR2}")
    e(f"v_lshl_add_u32 v{vR2}, v{vT1}, 3, v{vR2}"); e(f"v_add_u32 v{vR2}, s{sLB}, v{vR2}")
    e(f"v_lshlrev_b32 v{vFl}, 2, v{vL}")
    e(f"s_lshl_b32 s{sTmp}, s{sMB}, 11"); e(f"v_lshl_add_u32 v{vSc}, v{vL}, 4, s{sTmp}")
def w2loc(s):
    return 65536 + 4096*s if s < 4 else (4096*(s-4) if s < 6 else 32768)
def w2(s):
    for p in range(2):
        e(f"s_lshl_b32 s{sTmp}, s{sMB}, 11"); e(f"s_add_u32 s{sTmp}, s{sTmp}, s{sLB}")
        e(f"s_add_u32 m0, s{sTmp}, {w2loc(s) + p*1024}")
        e(f"s_add_u32 s{sTmp2}, s{sW2o}, {(32*s + 8*p)*2048}")
        e(f"buffer_load_dwordx4 v{vW2o}, s[{sW2}:{sW2+3}], s{sTmp2} offen{nt2} lds")
        q.append('w2')
ks = 0
for c, n in enumerate(chunks):
    for s in range(ks, ks+n):
        w13(2*s); w13(2*s+1); q.extend([c, c])
    for s in range(ks, ks+n):
        e(f"buffer_load_dwordx4 v[{vX+4*s}:{vX+4*s+3}], v{vXo}, s[{sX}:{sX+3}], 0 offen offset:{64*s}"); q.append(c)
    ks += n
setup2()
if opt['w2early']:
    for s in range(4): w2(s)
stamp()
def waitfor(tag):
    last = max(i for i, t in enumerate(q) if t == tag)
    e(f"s_waitcnt vmcnt({len(q)-1-last})")
def rd1(s, buf):
    for mt in range(2):
        for fb in range(2):
            d = vB + buf*16 + (mt*2+fb)*4
            for hf in range(2):
                e(f"ds_read_b64_tr_b16 v[{d+2*hf}:{d+2*hf+1}], v{vRA1 if fb else vRA0} offset:{mt*32768 + s*2048 + hf*256}")
def setflag():
    e(f"s_cmp_lg_u32 s{sWV}, 0"); e(f"s_cbranch_scc1 L_nf{len(L)}"); lb = f"L_nf{len(L)-1}"
    e(f"v_mov_b32 v{vT0}, 1"); e(f"v_mov_b32 v{vT1}, s2"); e("s_mov_b64 exec, 1")
    e(f"buffer_store_byte v{vT0}, v{vT1}, s[{sD}:{sD+3}], 0 offen sc1"); e("s_mov_b64 exec, -1")
    lab(lb)
ks = 0
for c, n in enumerate(chunks):
    waitfor(c); e("s_barrier")
    if c == 0: stamp()
    rd1(ks, ks & 1)
    if c == 0:
        setflag()
        if not opt['w2early']:
            for s in range(4): w2(s)
    if c == 1:
        for s in range(4, 7): w2(s)
    if c == len(chunks)-1:
        e(f"buffer_load_dword v{vTmp+30}, v{vFl}, s[{sD}:{sD+3}], 0 offen sc1")
    for s in range(ks, ks+n):
        if s+1 < ks+n:
            rd1(s+1, (s+1) & 1); e("s_waitcnt lgkmcnt(8)")
        else: e("s_waitcnt lgkmcnt(0)")
        for b in range(4):
            a = vACC + 4*b; d = vB + (s & 1)*16 + b*4
            cin = "0" if s == 0 else f"v[{a}:{a+3}]"
            e(f"v_mfma_f32_16x16x32_bf16 v[{a}:{a+3}], v[{d}:{d+3}], v[{vX+4*s}:{vX+4*s+3}], {cin}")
    ks += n
stamp()
e("s_nop 7")
for mt in range(2):
    for r in range(4):
        e(f"v_permlane32_swap_b32 v{vACC+8*mt+r}, v{vACC+8*mt+4+r}")
SCR = 32768 + 4096
e(f"s_cmp_eq_u32 s{sKI}, 0"); e("s_cbranch_scc1 L_k0")
e(f"ds_write_b128 v{vSc}, v[{vACC}:{vACC+3}] offset:{SCR}"); e(f"ds_write_b128 v{vSc}, v[{vACC+8}:{vACC+11}] offset:{SCR+1024}")
for r in range(4):
    e(f"v_mov_b32 v{vTmp+r}, v{vACC+4+r}"); e(f"v_mov_b32 v{vTmp+4+r}, v{vACC+12+r}")
e("s_branch L_k1")
lab("L_k0")
e(f"v_add_u32 v{vT0}, 81920, v{vSc}")
e(f"ds_write_b128 v{vT0}, v[{vACC+4}:{vACC+7}] offset:{SCR}"); e(f"ds_write_b128 v{vT0}, v[{vACC+12}:{vACC+15}] offset:{SCR+1024}")
for r in range(4):
    e(f"v_mov_b32 v{vTmp+r}, v{vACC+r}"); e(f"v_mov_b32 v{vTmp+4+r}, v{vACC+8+r}")
lab("L_k1")
e(f"v_add_u32 v{vT0}, s{sLB}, v{vSc}")
e("s_waitcnt lgkmcnt(0)"); e("s_barrier")
e(f"ds_read_b128 v[{vTmp+8}:{vTmp+11}], v{vT0} offset:{SCR}"); e(f"ds_read_b128 v[{vTmp+12}:{vTmp+15}], v{vT0} offset:{SCR+1024}")
e("s_waitcnt lgkmcnt(1)")
G, U, T = vTmp, vTmp+4, vTmp+16
for r in range(4): e(f"v_add_f32 v{G+r}, v{G+r}, v{vTmp+8+r}")
def rnd(b):
    e(f"v_cvt_pk_bf16_f32 v{vTmp+24}, v{b}, v{b+1}"); e(f"v_cvt_pk_bf16_f32 v{vTmp+25}, v{b+2}, v{b+3}")
    e(f"v_lshlrev_b32 v{b}, 16, v{vTmp+24}"); e(f"v_and_b32 v{b+1}, 0xffff0000, v{vTmp+24}")
    e(f"v_lshlrev_b32 v{b+2}, 16, v{vTmp+25}"); e(f"v_and_b32 v{b+3}, 0xffff0000, v{vTmp+25}")
if opt['mimic']: rnd(G)
for r in range(4): e(f"v_mul_f32 v{T+r}, 0xbfb8aa3b, v{G+r}")
for r in range(4): e(f"v_exp_f32 v{T+r}, v{T+r}")
e("s_waitcnt lgkmcnt(0)")
for r in range(4): e(f"v_add_f32 v{U+r}, v{U+r}, v{vTmp+12+r}")
for r in range(4): e(f"v_add_f32 v{T+r}, 1.0, v{T+r}")
for r in range(4): e(f"v_rcp_f32 v{T+r}, v{T+r}")
if opt['mimic']: rnd(U)
else: e("s_nop 0")
for r in range(4): e(f"v_mul_f32 v{G+r}, v{G+r}, v{T+r}")
if opt['mimic']: rnd(G)
for r in range(4): e(f"v_mul_f32 v{G+r}, v{G+r}, v{U+r}")
e(f"v_cvt_pk_bf16_f32 v{T}, v{G}, v{G+1}"); e(f"v_cvt_pk_bf16_f32 v{T+1}, v{G+2}, v{G+3}")
e(f"v_min_u32 v{T}, -2, v{T}"); e(f"v_min_u32 v{T+1}, -2, v{T+1}")
e("s_nop 1")
e(f"v_permlane32_swap_b32 v{T}, v{T+2}"); e(f"v_permlane32_swap_b32 v{T+1}, v{T+3}")
e("s_mov_b32 exec_hi, 0")
e(f"buffer_store_dwordx4 v[{T}:{T+3}], v{vHs}, s[{sWS}:{sWS+3}], 0 offen sc1")
e("s_mov_b64 exec, -1")
e("s_waitcnt vmcnt(1)")
e("s_branch L_p2")
lab("L_nop1")
n0 = nst[0]; nst[0] = 2
setup2(); stamp()
for s in range(7): w2(s)
e("s_waitcnt vmcnt(14)"); e("s_barrier"); stamp()
setflag(); stamp()
e(f"v_mov_b32 v{vTmp+30}, 0")
e("s_waitcnt vmcnt(0)")
assert nst[0] == n0 or not opt['diag']
lab("L_p2")
stamp()
e("s_barrier")
e(f"s_mov_b32 s{sCnt}, 0"); e(f"s_mov_b32 s{sTmp}, 0x01010101")
lab("L_fl")
e(f"v_cmp_ne_u32 vcc, s{sTmp}, v{vTmp+30}"); e("s_cbranch_vccz L_flok")
e(f"s_add_u32 s{sCnt}, s{sCnt}, 1"); e(f"s_cmp_gt_u32 s{sCnt}, 20000"); e("s_cbranch_scc1 L_flok")
e("s_sleep 2")
e(f"buffer_load_dword v{vTmp+30}, v{vFl}, s[{sD}:{sD+3}], 0 offen sc1"); e("s_waitcnt vmcnt(0)")
e("s_branch L_fl")
lab("L_flok")
def hload():
    for s in range(7):
        so = "0" if s < 4 else f"s{sOff}"
        e(f"buffer_load_dwordx4 v[{vH+4*s}:{vH+4*s+3}], v{vHo}, s[{sWS}:{sWS+3}], {so} offen offset:{(s%4)*1024} sc1")
e(f"s_movk_i32 s{sOff}, 0x1000")
hload()
e(f"v_add_u32 v{vR2x}, 0x10000, v{vR2}")
for nb in range(4):
    if nb:
        e(f"v_xor_b32 v{vT0}, {nb*32}, v{vR2}"); e(f"v_xor_b32 v{vT1}, {nb*32}, v{vR2x}")
    for s in range(7):
        for hf in range(2):
            d = vB2 + (s*4+nb)*4 + 2*hf
            o = w2loc(s) + hf*2048
            a = ((vT1 if nb else vR2x), o - 65536) if o >= 65536 else ((vT0 if nb else vR2), o)
            e(f"ds_read_b64_tr_b16 v[{d}:{d+1}], v{a[0]} offset:{a[1]}")
stamp()
e(f"s_mov_b32 s{sCnt}, 0")
lab("L_hp")
def chk(base, n, tgt):
    e(f"v_max3_u32 v{vT0}, v{base}, v{base+1}, v{base+2}")
    i = 3
    while i < n:
        if i+1 < n: e(f"v_max3_u32 v{vT0}, v{vT0}, v{base+i}, v{base+i+1}"); i += 2
        else: e(f"v_max_u32 v{vT0}, v{vT0}, v{base+i}"); i += 1
    e(f"v_cmp_eq_u32 vcc, -1, v{vT0}"); e(f"s_cbranch_vccz {tgt}")
    e(f"s_add_u32 s{sCnt}, s{sCnt}, 1"); e(f"s_cmp_gt_u32 s{sCnt}, 20000"); e(f"s_cbranch_scc1 {tgt}")
    if opt['sleep']: e(f"s_sleep {opt['sleep']}")
e("s_waitcnt vmcnt(0)")
chk(vH, 28, "L_hok")
hload(); e("s_branch L_hp")
lab("L_hok")
stamp()
if opt['diag']: e(f"s_mov_b32 s62, s{sCnt}")
e("s_waitcnt lgkmcnt(0)")
for s in range(7):
    for nb in range(4):
        a = vA2 + 4*nb; d = vB2 + (s*4+nb)*4
        cin = "0" if s == 0 else f"v[{a}:{a+3}]"
        e(f"v_mfma_f32_16x16x32_bf16 v[{a}:{a+3}], v[{d}:{d+3}], v[{vH+4*s}:{vH+4*s+3}], {cin}")
SC2 = 16384
e(f"s_cmp_eq_u32 s{sKI}, 0"); e("s_cbranch_scc1 L_q0")
e("s_nop 6")
e(f"ds_write_b128 v{vSc}, v[{vA2}:{vA2+3}] offset:{SC2}"); e(f"ds_write_b128 v{vSc}, v[{vA2+4}:{vA2+7}] offset:{SC2+1024}")
for r in range(8): e(f"v_mov_b32 v{vTmp+r}, v{vA2+8+r}")
e("s_branch L_q1")
lab("L_q0")
e(f"v_add_u32 v{vT0}, 81920, v{vSc}"); e("s_nop 6")
e(f"ds_write_b128 v{vT0}, v[{vA2+8}:{vA2+11}] offset:{SC2}"); e(f"ds_write_b128 v{vT0}, v[{vA2+12}:{vA2+15}] offset:{SC2+1024}")
for r in range(8): e(f"v_mov_b32 v{vTmp+r}, v{vA2+r}")
lab("L_q1")
e(f"v_add_u32 v{vT0}, s{sLB}, v{vSc}"); e(f"s_movk_i32 s{sTmp}, 0x2000")
e("s_waitcnt lgkmcnt(0)"); e("s_barrier")
e(f"ds_read_b128 v[{vTmp+8}:{vTmp+11}], v{vT0} offset:{SC2}"); e(f"ds_read_b128 v[{vTmp+12}:{vTmp+15}], v{vT0} offset:{SC2+1024}")
for h in range(2):
    e(f"s_waitcnt lgkmcnt({1-h})")
    for r in range(4): e(f"v_add_f32 v{vTmp+4*h+r}, v{vTmp+4*h+r}, v{vTmp+8+4*h+r}")
    for r in range(4): e(f"v_min_u32 v{vTmp+4*h+r}, -2, v{vTmp+4*h+r}")
    e(f"buffer_store_dwordx4 v[{vTmp+4*h}:{vTmp+4*h+3}], v{vPs}, s[{sWS}:{sWS+3}], {'s%d' % sTmp if h else 0} offen sc1")
stamp()
e(f"s_cmp_lg_u32 s{sWV}, 0"); e("s_cbranch_scc1 L_end")
e(f"s_lshl_b32 s{sTmp}, s{sI}, 3"); e(f"s_add_u32 s{sTmp}, s{sTmp}, s{sJ}"); e(f"s_lshl_b32 s{sTmp}, s{sTmp}, 13")
e(f"s_add_u32 s{sTmp}, s{sTmp}, {POFF}"); e(f"v_lshl_add_u32 v{vHo}, v{vL}, 4, s{sTmp}")
vP = 68
def pload():
    for s in range(8):
        so = "0" if s < 4 else f"s{sOff}"
        e(f"buffer_load_dwordx4 v[{vP+4*s}:{vP+4*s+3}], v{vHo}, s[{sWS}:{sWS+3}], {so} offen offset:{(s%4)*1024} sc1")
pload()
e(f"s_lshl_b32 s{sTmp}, s{sMI}, 1"); e(f"s_lshr_b32 s{sTmp2}, s{sJ}, 2"); e(f"s_add_u32 s{sTmp}, s{sTmp}, s{sTmp2}"); e(f"s_lshl_b32 s{sTmp}, s{sTmp}, 15")
e(f"s_lshl_b32 s{sTmp2}, s{sT}, 7"); e(f"s_add_u32 s{sTmp}, s{sTmp}, s{sTmp2}")
e(f"s_and_b32 s{sTmp2}, s{sJ}, 3"); e(f"s_lshl_b32 s{sTmp2}, s{sTmp2}, 5"); e(f"s_add_u32 s{sTmp}, s{sTmp}, s{sTmp2}")
e(f"v_and_b32 v{vT0}, 15, v{vL}"); e(f"v_lshl_add_u32 v{vXo}, v{vT0}, 11, s{sTmp}")
e(f"v_lshrrev_b32 v{vT0}, 4, v{vL}"); e(f"v_lshl_add_u32 v{vXo}, v{vT0}, 3, v{vXo}")
e(f"s_mov_b32 s{sCnt}, 0")
lab("L_pp")
e("s_waitcnt vmcnt(0)")
chk(vP, 32, "L_pok")
pload(); e("s_branch L_pp")
lab("L_pok")
stamp()
for st in (16, 8, 4):
    for r in range(st): e(f"v_add_f32 v{vP+r}, v{vP+r}, v{vP+st+r}")
e(f"v_cvt_pk_bf16_f32 v{vP}, v{vP}, v{vP+1}"); e(f"v_cvt_pk_bf16_f32 v{vP+1}, v{vP+2}, v{vP+3}")
e(f"buffer_store_dwordx2 v[{vP}:{vP+1}], v{vXo}, s[{sO}:{sO+3}], 0 offen")
if opt['diag']:
    e("s_waitcnt vmcnt(0)"); stamp(); e("s_waitcnt lgkmcnt(0)")
    e(f"s_lshl_b32 s{sTmp}, s2, 6"); e(f"s_add_u32 s{sTmp}, s{sTmp}, {DOFF}"); e(f"v_mov_b32 v{vT1}, s{sTmp}")
    e("s_getreg_b32 s63, hwreg(HW_REG_XCC_ID)")
    src = [sST+2*k for k in range(nst[0])] + [62, sCnt, 63]
    assert len(src) <= 16
    e("s_mov_b64 exec, 1")
    for k, s in enumerate(src):
        e(f"v_mov_b32 v{vTmp+k}, s{s}"); e(f"buffer_store_dword v{vTmp+k}, v{vT1}, s[{sWS}:{sWS+3}], 0 offen offset:{4*k}")
lab("L_end")
e("s_endpgm")
hdr = open('cdna_kernels/' + NAME + '.s.ref').read().split('\n')
hdr = [h for h in hdr if h.startswith(';') and '@launch' not in h]
txt = '\n'.join(hdr) + f"""
; @launch grid=(256,1,1) block=(256,1,1) lds=163840
.amdgcn_target "amdgcn-amd-amdhsa--gfx950"
.text
.globl {NAME}_kernel
.p2align 8
.type {NAME}_kernel,@function
{NAME}_kernel:
""" + '\n'.join(L) + f"""
.section .rodata,"a"
.p2align 6
.amdhsa_kernel {NAME}_kernel
  .amdhsa_next_free_vgpr 256
  .amdhsa_next_free_sgpr 102
  .amdhsa_accum_offset 256
  .amdhsa_group_segment_fixed_size 0
  .amdhsa_kernarg_size 56
  .amdhsa_user_sgpr_count 2
  .amdhsa_user_sgpr_kernarg_segment_ptr 1
  .amdhsa_system_sgpr_workgroup_id_x 1
.end_amdhsa_kernel
"""
open(out, 'w').write(txt)
```

```python
import sys
opt = dict(diag=0, nt13=0, nt2=0, w2early=0, sleep=1, chunks="4,4,4,2,2", mimic=0, noreset=0, noflag=0, nox=0)
out = None
for a in sys.argv[1:]:
    if '=' in a:
        k, v = a.split('='); opt[k] = v if k == 'chunks' else int(v)
    else: out = a
NAME = "standalone__glu_gated_swiglu__sampling"
L = []
def e(s): L.append("    " + s)
def lab(s): L.append(s + ":")
chunks = [int(c) for c in opt['chunks'].split(',')]
assert sum(chunks) == 16 and chunks[0] >= 4
HOFF = 0
POFF = 0x80000
DOFF = 0x800000
WSSZ = 0x1000000
sX, sW, sW2, sO, sD, sWS = 8, 12, 16, 20, 24, 28
sJ, sI, sMI, sT, sWV, sMB, sKI = 32, 33, 34, 35, 36, 37, 38
sOff, sM0, sTmp, sTmp2, sCnt, sLB, sW2o = 39, 40, 41, 42, 43, 44, 45
sST = 64
vL, vWo, vXo, vRA0, vRA1, vHs, vPs, vW2o, vT0, vT1, vS = 0, 1, 2, 3, 4, 5, 6, 7, 8, 9, 12
vR2, vR2x, vFl, vHo, vSc = 10, 11, 16, 17, 18
vACC = 20
vB = 36
vX = 68
vB2 = 68
vH = 180
vA2 = 208
vTmp = 224
nst = [0]
def stamp():
    if opt['diag']:
        e(f"s_memrealtime s[{sST+2*nst[0]}:{sST+2*nst[0]+1}]"); nst[0] += 1
def srd(d, lo, size):
    e(f"s_mov_b32 s{d}, s{lo}"); e(f"s_and_b32 s{d+1}, s{lo+1}, 0xffff")
    e(f"s_mov_b32 s{d+2}, {size}"); e(f"s_mov_b32 s{d+3}, 0x20000")
nt13 = " nt" if opt['nt13'] else ""
nt2 = " nt" if opt['nt2'] else ""

e("s_cmp_ge_u32 s2, 256"); e("s_cbranch_scc1 L_end")
e("s_load_dwordx8 s[48:55], s[0:1], 0")
e("s_load_dwordx4 s[56:59], s[0:1], 32")
e("s_load_dwordx2 s[60:61], s[0:1], 48")
stamp()
e(f"v_lshrrev_b32 v{vT0}, 6, v0"); e(f"v_and_b32 v{vL}, 63, v0")
e(f"v_readfirstlane_b32 s{sWV}, v{vT0}")
e(f"s_and_b32 s{sJ}, s2, 7"); e(f"s_lshr_b32 s{sI}, s2, 3")
e(f"s_and_b32 s{sMI}, s{sI}, 1"); e(f"s_lshr_b32 s{sT}, s{sI}, 1")
e(f"s_and_b32 s{sMB}, s{sWV}, 1"); e(f"s_lshr_b32 s{sKI}, s{sWV}, 1")
e(f"s_mul_i32 s{sLB}, s{sKI}, 81920")
e(f"v_lshrrev_b32 v{vT0}, 2, v{vL}"); e(f"v_mul_u32_u24 v{vWo}, 7168, v{vT0}")
e(f"v_lshrrev_b32 v{vT0}, 4, v{vL}"); e(f"v_and_b32 v{vT0}, 2, v{vT0}")
e(f"v_and_b32 v{vT1}, 3, v{vL}"); e(f"v_xor_b32 v{vT0}, v{vT0}, v{vT1}")
e(f"v_lshl_add_u32 v{vWo}, v{vT0}, 4, v{vWo}")
e(f"s_mul_i32 s{sTmp}, s{sJ}, 14"); e(f"s_add_u32 s{sTmp}, s{sTmp}, s{sT}")
e(f"s_lshl_b32 s{sOff}, s{sTmp}, 6"); e(f"s_mul_i32 s{sTmp2}, s{sKI}, {512*7168}")
e(f"s_add_u32 s{sOff}, s{sOff}, s{sTmp2}")
e(f"s_lshl_b32 s{sM0}, s{sMB}, 15"); e(f"s_add_u32 s{sM0}, s{sM0}, s{sLB}")
e(f"s_lshl_b32 s{sTmp2}, s{sMI}, 1"); e(f"s_add_u32 s{sTmp2}, s{sTmp2}, s{sMB}")
e(f"s_mul_i32 s{sCnt}, s{sTmp2}, 112"); e(f"s_add_u32 s{sTmp}, s{sTmp}, s{sCnt}")
e(f"s_lshl_b32 s{sTmp}, s{sTmp}, 1"); e(f"s_add_u32 s{sTmp}, s{sTmp}, s{sKI}"); e(f"s_lshl_b32 s{sTmp}, s{sTmp}, 9")
e(f"v_and_b32 v{vT0}, 31, v{vL}"); e(f"v_lshl_add_u32 v{vHs}, v{vT0}, 4, s{sTmp}")
e(f"s_mul_i32 s{sTmp}, s{sJ}, 14"); e(f"s_add_u32 s{sCnt}, s{sCnt}, s{sTmp}")
e(f"s_mul_i32 s{sTmp}, s{sKI}, 7"); e(f"s_add_u32 s{sCnt}, s{sCnt}, s{sTmp}"); e(f"s_lshl_b32 s{sCnt}, s{sCnt}, 10")
e(f"v_lshl_add_u32 v{vHo}, v{vL}, 4, s{sCnt}")
e(f"s_lshl_b32 s{sTmp2}, s{sTmp2}, 15"); e(f"s_lshl_b32 s{sTmp}, s{sKI}, 10"); e(f"s_add_u32 s{sTmp2}, s{sTmp2}, s{sTmp}")
e(f"v_and_b32 v{vT0}, 15, v{vL}"); e(f"v_lshl_add_u32 v{vXo}, v{vT0}, 11, s{sTmp2}")
e(f"v_and_b32 v{vT1}, 48, v{vL}"); e(f"v_add_u32 v{vXo}, v{vXo}, v{vT1}")
e(f"s_lshl_b32 s{sTmp}, s{sI}, 3"); e(f"s_lshl_b32 s{sTmp2}, s{sMB}, 2"); e(f"s_add_u32 s{sTmp}, s{sTmp}, s{sTmp2}")
e(f"s_lshl_b32 s{sTmp2}, s{sKI}, 1"); e(f"s_add_u32 s{sTmp}, s{sTmp}, s{sTmp2}")
e(f"s_lshl_b32 s{sTmp}, s{sTmp}, 3"); e(f"s_add_u32 s{sTmp}, s{sTmp}, s{sJ}"); e(f"s_lshl_b32 s{sTmp}, s{sTmp}, 10")
e(f"s_add_u32 s{sTmp}, s{sTmp}, {POFF}")
e(f"v_lshl_add_u32 v{vPs}, v{vL}, 4, s{sTmp}")
for r in range(4): e(f"v_mov_b32 v{vS+r}, -1")
e("s_waitcnt lgkmcnt(0)")
stamp()
srd(sWS, 60, WSSZ)
e(f"s_cmp_eq_u32 s{sMB}, 0"); e("s_cselect_b32 s46, s50, s52"); e("s_cselect_b32 s47, s51, s53")
srd(sW, 46, 7340032)
srd(sX, 48, 131072)
e(f"s_movk_i32 s{sTmp}, 0x2000")
if not opt['noreset']:
    e(f"buffer_store_dwordx4 v[{vS}:{vS+3}], v{vPs}, s[{sWS}:{sWS+3}], 0 offen sc1")
    e(f"buffer_store_dwordx4 v[{vS}:{vS+3}], v{vPs}, s[{sWS}:{sWS+3}], s{sTmp} offen sc1")
e(f"s_cmp_ge_u32 s{sI}, 28"); e("s_cbranch_scc1 L_nop1")
if not opt['noreset']: e(f"buffer_store_dwordx4 v[{vS}:{vS+3}], v{vHs}, s[{sWS}:{sWS+3}], 0 offen sc1")
q = []
def w13(n):
    e(f"s_mov_b32 m0, s{sM0}"); e(f"s_add_u32 s{sM0}, s{sM0}, 1024")
    e(f"buffer_load_dwordx4 v{vWo}, s[{sW}:{sW+3}], s{sOff} offen{nt13} lds")
    e(f"s_add_u32 s{sOff}, s{sOff}, {16*7168}")
def setup2():
    srd(sW2, 54, 7340032); srd(sO, 56, 131072); srd(sD, 58, 256)
    e(f"v_lshrrev_b32 v{vT0}, 3, v{vL}"); e(f"v_lshlrev_b32 v{vW2o}, 11, v{vT0}")
    e(f"v_and_b32 v{vT0}, 6, v{vT0}"); e(f"v_and_b32 v{vT1}, 7, v{vL}"); e(f"v_xor_b32 v{vT0}, v{vT0}, v{vT1}")
    e(f"v_lshl_add_u32 v{vW2o}, v{vT0}, 4, v{vW2o}")
    e(f"s_mul_i32 s{sW2o}, s{sJ}, 448"); e(f"s_mul_i32 s{sTmp}, s{sKI}, 224"); e(f"s_add_u32 s{sW2o}, s{sW2o}, s{sTmp}")
    e(f"s_lshl_b32 s{sTmp}, s{sMB}, 4"); e(f"s_add_u32 s{sW2o}, s{sW2o}, s{sTmp}"); e(f"s_lshl_b32 s{sW2o}, s{sW2o}, 11")
    e(f"s_lshl_b32 s{sTmp}, s{sT}, 7"); e(f"s_add_u32 s{sW2o}, s{sW2o}, s{sTmp}")
    e(f"v_lshrrev_b32 v{vT0}, 4, v{vL}"); e(f"v_lshlrev_b32 v{vRA0}, 9, v{vT0}")
    e(f"v_and_b32 v{vT0}, 1, v{vT0}"); e(f"v_lshl_add_u32 v{vRA0}, v{vT0}, 5, v{vRA0}")
    e(f"v_and_b32 v{vT0}, 12, v{vL}"); e(f"v_lshl_add_u32 v{vRA0}, v{vT0}, 4, v{vRA0}")
    e(f"v_and_b32 v{vT1}, 3, v{vL}"); e(f"v_lshl_add_u32 v{vRA0}, v{vT1}, 3, v{vRA0}")
    e(f"v_add_u32 v{vRA0}, s{sLB}, v{vRA0}"); e(f"v_xor_b32 v{vRA1}, 32, v{vRA0}")
    e(f"v_lshrrev_b32 v{vT0}, 2, v{vL}"); e(f"v_lshlrev_b32 v{vR2}, 7, v{vT0}")
    e(f"v_and_b32 v{vT0}, 6, v{vT0}"); e(f"v_lshl_add_u32 v{vR2}, v{vT0}, 4, v{vR2}")
    e(f"v_lshl_add_u32 v{vR2}, v{vT1}, 3, v{vR2}"); e(f"v_add_u32 v{vR2}, s{sLB}, v{vR2}")
    e(f"v_lshlrev_b32 v{vFl}, 2, v{vL}")
    e(f"s_lshl_b32 s{sTmp}, s{sMB}, 11"); e(f"v_lshl_add_u32 v{vSc}, v{vL}, 4, s{sTmp}")
def w2loc(s):
    return 65536 + 4096*s if s < 4 else (4096*(s-4) if s < 6 else 32768)
def w2(s):
    for p in range(2):
        e(f"s_lshl_b32 s{sTmp}, s{sMB}, 11"); e(f"s_add_u32 s{sTmp}, s{sTmp}, s{sLB}")
        e(f"s_add_u32 m0, s{sTmp}, {w2loc(s) + p*1024}")
        e(f"s_add_u32 s{sTmp2}, s{sW2o}, {(32*s + 8*p)*2048}")
        e(f"buffer_load_dwordx4 v{vW2o}, s[{sW2}:{sW2+3}], s{sTmp2} offen{nt2} lds")
        q.append('w2')
ks = 0
for c, n in enumerate(chunks):
    for s in range(ks, ks+n):
        w13(2*s); w13(2*s+1); q.extend([c, c])
    for s in range(ks, ks+n):
        if opt['nox']: continue
        e(f"buffer_load_dwordx4 v[{vX+4*s}:{vX+4*s+3}], v{vXo}, s[{sX}:{sX+3}], 0 offen offset:{64*s}"); q.append(c)
    ks += n
setup2()
if opt['w2early']:
    for s in range(4): w2(s)
stamp()
def waitfor(tag):
    last = max(i for i, t in enumerate(q) if t == tag)
    e(f"s_waitcnt vmcnt({len(q)-1-last})")
def rd1(s, buf):
    for mt in range(2):
        for fb in range(2):
            d = vB + buf*16 + (mt*2+fb)*4
            for hf in range(2):
                e(f"ds_read_b64_tr_b16 v[{d+2*hf}:{d+2*hf+1}], v{vRA1 if fb else vRA0} offset:{mt*32768 + s*2048 + hf*256}")
def setflag():
    if opt['noflag']: return
    e(f"s_cmp_lg_u32 s{sWV}, 0"); e(f"s_cbranch_scc1 L_nf{len(L)}"); lb = f"L_nf{len(L)-1}"
    e(f"v_mov_b32 v{vT0}, 1"); e(f"v_mov_b32 v{vT1}, s2"); e("s_mov_b64 exec, 1")
    e(f"buffer_store_byte v{vT0}, v{vT1}, s[{sD}:{sD+3}], 0 offen sc1"); e("s_mov_b64 exec, -1")
    lab(lb)
ks = 0
for c, n in enumerate(chunks):
    waitfor(c); e("s_barrier")
    if c == 0: stamp()
    rd1(ks, ks & 1)
    if c == 0:
        setflag()
        if not opt['w2early']:
            for s in range(4): w2(s)
    if c == 1:
        for s in range(4, 7): w2(s)
    if c == len(chunks)-1:
        e(f"buffer_load_dword v{vTmp+30}, v{vFl}, s[{sD}:{sD+3}], 0 offen sc1")
    for s in range(ks, ks+n):
        if s+1 < ks+n:
            rd1(s+1, (s+1) & 1); e("s_waitcnt lgkmcnt(8)")
        else: e("s_waitcnt lgkmcnt(0)")
        for b in range(4):
            a = vACC + 4*b; d = vB + (s & 1)*16 + b*4
            cin = "0" if s == 0 else f"v[{a}:{a+3}]"
            e(f"v_mfma_f32_16x16x32_bf16 v[{a}:{a+3}], v[{d}:{d+3}], v[{vX+4*s}:{vX+4*s+3}], {cin}")
    ks += n
stamp()
e("s_nop 7")
for mt in range(2):
    for r in range(4):
        e(f"v_permlane32_swap_b32 v{vACC+8*mt+r}, v{vACC+8*mt+4+r}")
SCR = 32768 + 4096
e(f"s_cmp_eq_u32 s{sKI}, 0"); e("s_cbranch_scc1 L_k0")
e(f"ds_write_b128 v{vSc}, v[{vACC}:{vACC+3}] offset:{SCR}"); e(f"ds_write_b128 v{vSc}, v[{vACC+8}:{vACC+11}] offset:{SCR+1024}")
for r in range(4):
    e(f"v_mov_b32 v{vTmp+r}, v{vACC+4+r}"); e(f"v_mov_b32 v{vTmp+4+r}, v{vACC+12+r}")
e("s_branch L_k1")
lab("L_k0")
e(f"v_add_u32 v{vT0}, 81920, v{vSc}")
e(f"ds_write_b128 v{vT0}, v[{vACC+4}:{vACC+7}] offset:{SCR}"); e(f"ds_write_b128 v{vT0}, v[{vACC+12}:{vACC+15}] offset:{SCR+1024}")
for r in range(4):
    e(f"v_mov_b32 v{vTmp+r}, v{vACC+r}"); e(f"v_mov_b32 v{vTmp+4+r}, v{vACC+8+r}")
lab("L_k1")
e(f"v_add_u32 v{vT0}, s{sLB}, v{vSc}")
e("s_waitcnt lgkmcnt(0)"); e("s_barrier")
e(f"ds_read_b128 v[{vTmp+8}:{vTmp+11}], v{vT0} offset:{SCR}"); e(f"ds_read_b128 v[{vTmp+12}:{vTmp+15}], v{vT0} offset:{SCR+1024}")
e("s_waitcnt lgkmcnt(1)")
G, U, T = vTmp, vTmp+4, vTmp+16
for r in range(4): e(f"v_add_f32 v{G+r}, v{G+r}, v{vTmp+8+r}")
def rnd(b):
    e(f"v_cvt_pk_bf16_f32 v{vTmp+24}, v{b}, v{b+1}"); e(f"v_cvt_pk_bf16_f32 v{vTmp+25}, v{b+2}, v{b+3}")
    e(f"v_lshlrev_b32 v{b}, 16, v{vTmp+24}"); e(f"v_and_b32 v{b+1}, 0xffff0000, v{vTmp+24}")
    e(f"v_lshlrev_b32 v{b+2}, 16, v{vTmp+25}"); e(f"v_and_b32 v{b+3}, 0xffff0000, v{vTmp+25}")
if opt['mimic']: rnd(G)
for r in range(4): e(f"v_mul_f32 v{T+r}, 0xbfb8aa3b, v{G+r}")
for r in range(4): e(f"v_exp_f32 v{T+r}, v{T+r}")
e("s_waitcnt lgkmcnt(0)")
for r in range(4): e(f"v_add_f32 v{U+r}, v{U+r}, v{vTmp+12+r}")
for r in range(4): e(f"v_add_f32 v{T+r}, 1.0, v{T+r}")
for r in range(4): e(f"v_rcp_f32 v{T+r}, v{T+r}")
if opt['mimic']: rnd(U)
else: e("s_nop 0")
for r in range(4): e(f"v_mul_f32 v{G+r}, v{G+r}, v{T+r}")
if opt['mimic']: rnd(G)
for r in range(4): e(f"v_mul_f32 v{G+r}, v{G+r}, v{U+r}")
e(f"v_cvt_pk_bf16_f32 v{T}, v{G}, v{G+1}"); e(f"v_cvt_pk_bf16_f32 v{T+1}, v{G+2}, v{G+3}")
e(f"v_min_u32 v{T}, -2, v{T}"); e(f"v_min_u32 v{T+1}, -2, v{T+1}")
e("s_nop 1")
e(f"v_permlane32_swap_b32 v{T}, v{T+2}"); e(f"v_permlane32_swap_b32 v{T+1}, v{T+3}")
e("s_mov_b32 exec_hi, 0")
e(f"buffer_store_dwordx4 v[{T}:{T+3}], v{vHs}, s[{sWS}:{sWS+3}], 0 offen sc1")
e("s_mov_b64 exec, -1")
e("s_waitcnt vmcnt(1)")
e("s_branch L_p2")
lab("L_nop1")
n0 = nst[0]; nst[0] = 2
setup2(); stamp()
for s in range(7): w2(s)
e("s_waitcnt vmcnt(14)"); e("s_barrier"); stamp()
setflag(); stamp()
e(f"v_mov_b32 v{vTmp+30}, 0")
e("s_waitcnt vmcnt(0)")
assert nst[0] == n0 or not opt['diag']
lab("L_p2")
stamp()
e("s_barrier")
e(f"s_mov_b32 s{sCnt}, 0"); e(f"s_mov_b32 s{sTmp}, 0x01010101")
lab("L_fl")
if opt['noflag']: e("s_branch L_flok")
e(f"v_cmp_ne_u32 vcc, s{sTmp}, v{vTmp+30}"); e("s_cbranch_vccz L_flok")
e(f"s_add_u32 s{sCnt}, s{sCnt}, 1"); e(f"s_cmp_gt_u32 s{sCnt}, 20000"); e("s_cbranch_scc1 L_flok")
e("s_sleep 2")
e(f"buffer_load_dword v{vTmp+30}, v{vFl}, s[{sD}:{sD+3}], 0 offen sc1"); e("s_waitcnt vmcnt(0)")
e("s_branch L_fl")
lab("L_flok")
def hload():
    for s in range(7):
        so = "0" if s < 4 else f"s{sOff}"
        e(f"buffer_load_dwordx4 v[{vH+4*s}:{vH+4*s+3}], v{vHo}, s[{sWS}:{sWS+3}], {so} offen offset:{(s%4)*1024} sc1")
e(f"s_movk_i32 s{sOff}, 0x1000")
hload()
e(f"v_add_u32 v{vR2x}, 0x10000, v{vR2}")
for nb in range(4):
    if nb:
        e(f"v_xor_b32 v{vT0}, {nb*32}, v{vR2}"); e(f"v_xor_b32 v{vT1}, {nb*32}, v{vR2x}")
    for s in range(7):
        for hf in range(2):
            d = vB2 + (s*4+nb)*4 + 2*hf
            o = w2loc(s) + hf*2048
            a = ((vT1 if nb else vR2x), o - 65536) if o >= 65536 else ((vT0 if nb else vR2), o)
            e(f"ds_read_b64_tr_b16 v[{d}:{d+1}], v{a[0]} offset:{a[1]}")
stamp()
e(f"s_mov_b32 s{sCnt}, 0")
lab("L_hp")
def chk(base, n, tgt):
    e(f"v_max3_u32 v{vT0}, v{base}, v{base+1}, v{base+2}")
    i = 3
    while i < n:
        if i+1 < n: e(f"v_max3_u32 v{vT0}, v{vT0}, v{base+i}, v{base+i+1}"); i += 2
        else: e(f"v_max_u32 v{vT0}, v{vT0}, v{base+i}"); i += 1
    e(f"v_cmp_eq_u32 vcc, -1, v{vT0}"); e(f"s_cbranch_vccz {tgt}")
    e(f"s_add_u32 s{sCnt}, s{sCnt}, 1"); e(f"s_cmp_gt_u32 s{sCnt}, 20000"); e(f"s_cbranch_scc1 {tgt}")
    if opt['sleep']: e(f"s_sleep {opt['sleep']}")
e("s_waitcnt vmcnt(0)")
chk(vH, 28, "L_hok")
hload(); e("s_branch L_hp")
lab("L_hok")
stamp()
if opt['diag']: e(f"s_mov_b32 s62, s{sCnt}")
e("s_waitcnt lgkmcnt(0)")
for s in range(7):
    for nb in range(4):
        a = vA2 + 4*nb; d = vB2 + (s*4+nb)*4
        cin = "0" if s == 0 else f"v[{a}:{a+3}]"
        e(f"v_mfma_f32_16x16x32_bf16 v[{a}:{a+3}], v[{d}:{d+3}], v[{vH+4*s}:{vH+4*s+3}], {cin}")
SC2 = 16384
e(f"s_cmp_eq_u32 s{sKI}, 0"); e("s_cbranch_scc1 L_q0")
e("s_nop 6")
e(f"ds_write_b128 v{vSc}, v[{vA2}:{vA2+3}] offset:{SC2}"); e(f"ds_write_b128 v{vSc}, v[{vA2+4}:{vA2+7}] offset:{SC2+1024}")
for r in range(8): e(f"v_mov_b32 v{vTmp+r}, v{vA2+8+r}")
e("s_branch L_q1")
lab("L_q0")
e(f"v_add_u32 v{vT0}, 81920, v{vSc}"); e("s_nop 6")
e(f"ds_write_b128 v{vT0}, v[{vA2+8}:{vA2+11}] offset:{SC2}"); e(f"ds_write_b128 v{vT0}, v[{vA2+12}:{vA2+15}] offset:{SC2+1024}")
for r in range(8): e(f"v_mov_b32 v{vTmp+r}, v{vA2+r}")
lab("L_q1")
e(f"v_add_u32 v{vT0}, s{sLB}, v{vSc}"); e(f"s_movk_i32 s{sTmp}, 0x2000")
e("s_waitcnt lgkmcnt(0)"); e("s_barrier")
e(f"ds_read_b128 v[{vTmp+8}:{vTmp+11}], v{vT0} offset:{SC2}"); e(f"ds_read_b128 v[{vTmp+12}:{vTmp+15}], v{vT0} offset:{SC2+1024}")
for h in range(2):
    e(f"s_waitcnt lgkmcnt({1-h})")
    for r in range(4): e(f"v_add_f32 v{vTmp+4*h+r}, v{vTmp+4*h+r}, v{vTmp+8+4*h+r}")
    for r in range(4): e(f"v_min_u32 v{vTmp+4*h+r}, -2, v{vTmp+4*h+r}")
    e(f"buffer_store_dwordx4 v[{vTmp+4*h}:{vTmp+4*h+3}], v{vPs}, s[{sWS}:{sWS+3}], {'s%d' % sTmp if h else 0} offen sc1")
stamp()
e(f"s_cmp_lg_u32 s{sWV}, 0"); e("s_cbranch_scc1 L_end")
e(f"s_lshl_b32 s{sTmp}, s{sI}, 3"); e(f"s_add_u32 s{sTmp}, s{sTmp}, s{sJ}"); e(f"s_lshl_b32 s{sTmp}, s{sTmp}, 13")
e(f"s_add_u32 s{sTmp}, s{sTmp}, {POFF}"); e(f"v_lshl_add_u32 v{vHo}, v{vL}, 4, s{sTmp}")
vP = 68
def pload():
    for s in range(8):
        so = "0" if s < 4 else f"s{sOff}"
        e(f"buffer_load_dwordx4 v[{vP+4*s}:{vP+4*s+3}], v{vHo}, s[{sWS}:{sWS+3}], {so} offen offset:{(s%4)*1024} sc1")
pload()
e(f"s_lshl_b32 s{sTmp}, s{sMI}, 1"); e(f"s_lshr_b32 s{sTmp2}, s{sJ}, 2"); e(f"s_add_u32 s{sTmp}, s{sTmp}, s{sTmp2}"); e(f"s_lshl_b32 s{sTmp}, s{sTmp}, 15")
e(f"s_lshl_b32 s{sTmp2}, s{sT}, 7"); e(f"s_add_u32 s{sTmp}, s{sTmp}, s{sTmp2}")
e(f"s_and_b32 s{sTmp2}, s{sJ}, 3"); e(f"s_lshl_b32 s{sTmp2}, s{sTmp2}, 5"); e(f"s_add_u32 s{sTmp}, s{sTmp}, s{sTmp2}")
e(f"v_and_b32 v{vT0}, 15, v{vL}"); e(f"v_lshl_add_u32 v{vXo}, v{vT0}, 11, s{sTmp}")
e(f"v_lshrrev_b32 v{vT0}, 4, v{vL}"); e(f"v_lshl_add_u32 v{vXo}, v{vT0}, 3, v{vXo}")
e(f"s_mov_b32 s{sCnt}, 0")
lab("L_pp")
e("s_waitcnt vmcnt(0)")
chk(vP, 32, "L_pok")
pload(); e("s_branch L_pp")
lab("L_pok")
stamp()
for st in (16, 8, 4):
    for r in range(st): e(f"v_add_f32 v{vP+r}, v{vP+r}, v{vP+st+r}")
e(f"v_cvt_pk_bf16_f32 v{vP}, v{vP}, v{vP+1}"); e(f"v_cvt_pk_bf16_f32 v{vP+1}, v{vP+2}, v{vP+3}")
e(f"buffer_store_dwordx2 v[{vP}:{vP+1}], v{vXo}, s[{sO}:{sO+3}], 0 offen")
if opt['diag']:
    e("s_waitcnt vmcnt(0)"); stamp(); e("s_waitcnt lgkmcnt(0)")
    e(f"s_lshl_b32 s{sTmp}, s2, 6"); e(f"s_add_u32 s{sTmp}, s{sTmp}, {DOFF}"); e(f"v_mov_b32 v{vT1}, s{sTmp}")
    e("s_getreg_b32 s63, hwreg(HW_REG_XCC_ID)")
    src = [sST+2*k for k in range(nst[0])] + [62, sCnt, 63]
    assert len(src) <= 16
    e("s_mov_b64 exec, 1")
    for k, s in enumerate(src):
        e(f"v_mov_b32 v{vTmp+k}, s{s}"); e(f"buffer_store_dword v{vTmp+k}, v{vT1}, s[{sWS}:{sWS+3}], 0 offen offset:{4*k}")
lab("L_end")
e("s_endpgm")
hdr = open('cdna_kernels/' + NAME + '.s.ref').read().split('\n')
hdr = [h for h in hdr if h.startswith(';') and '@launch' not in h]
txt = '\n'.join(hdr) + f"""
; @launch grid=(256,1,1) block=(256,1,1) lds=163840
.amdgcn_target "amdgcn-amd-amdhsa--gfx950"
.text
.globl {NAME}_kernel
.p2align 8
.type {NAME}_kernel,@function
{NAME}_kernel:
""" + '\n'.join(L) + f"""
.section .rodata,"a"
.p2align 6
.amdhsa_kernel {NAME}_kernel
  .amdhsa_next_free_vgpr 256
  .amdhsa_next_free_sgpr 102
  .amdhsa_accum_offset 256
  .amdhsa_group_segment_fixed_size 0
  .amdhsa_kernarg_size 56
  .amdhsa_user_sgpr_count 2
  .amdhsa_user_sgpr_kernarg_segment_ptr 1
  .amdhsa_system_sgpr_workgroup_id_x 1
.end_amdhsa_kernel
"""
open(out, 'w').write(txt)
```

```python
import sys
opt = dict(diag=0, nt13=0, nt2=0, w2early=0, sleep=1, chunks="4,4,4,2,2", mimic=0, noreset=0, noflag=0, nox=0, tk=-1)
out = None
for a in sys.argv[1:]:
    if '=' in a:
        k, v = a.split('='); opt[k] = v if k == 'chunks' else int(v)
    else: out = a
NAME = "standalone__glu_gated_swiglu__sampling"
L = []
def e(s): L.append("    " + s)
def lab(s): L.append(s + ":")
chunks = [int(c) for c in opt['chunks'].split(',')]
assert sum(chunks) == 16 and chunks[0] >= 4
HOFF = 0
POFF = 0x80000
DOFF = 0x800000
WSSZ = 0x1000000
sX, sW, sW2, sO, sD, sWS = 8, 12, 16, 20, 24, 28
sJ, sI, sMI, sT, sWV, sMB, sKI = 32, 33, 34, 35, 36, 37, 38
sOff, sM0, sTmp, sTmp2, sCnt, sLB, sW2o = 39, 40, 41, 42, 43, 44, 45
sST = 64
vL, vWo, vXo, vRA0, vRA1, vHs, vPs, vW2o, vT0, vT1, vS = 0, 1, 2, 3, 4, 5, 6, 7, 8, 9, 12
vR2, vR2x, vFl, vHo, vSc = 10, 11, 16, 17, 18
vACC = 20
vB = 36
vX = 68
vB2 = 68
vH = 180
vA2 = 208
vTmp = 224
nst = [0]
def stamp():
    if opt['diag']:
        e(f"s_memrealtime s[{sST+2*nst[0]}:{sST+2*nst[0]+1}]"); nst[0] += 1
def srd(d, lo, size):
    e(f"s_mov_b32 s{d}, s{lo}"); e(f"s_and_b32 s{d+1}, s{lo+1}, 0xffff")
    e(f"s_mov_b32 s{d+2}, {size}"); e(f"s_mov_b32 s{d+3}, 0x20000")
nt13 = " nt" if opt['nt13'] else ""
nt2 = " nt" if opt['nt2'] else ""

e("s_cmp_ge_u32 s2, 256"); e("s_cbranch_scc1 L_end")
e("s_load_dwordx8 s[48:55], s[0:1], 0")
e("s_load_dwordx4 s[56:59], s[0:1], 32")
e("s_load_dwordx2 s[60:61], s[0:1], 48")
stamp()
e(f"v_lshrrev_b32 v{vT0}, 6, v0"); e(f"v_and_b32 v{vL}, 63, v0")
e(f"v_readfirstlane_b32 s{sWV}, v{vT0}")
e(f"s_and_b32 s{sJ}, s2, 7"); e(f"s_lshr_b32 s{sI}, s2, 3")
e(f"s_and_b32 s{sMI}, s{sI}, 1"); e(f"s_lshr_b32 s{sT}, s{sI}, 1")
e(f"s_and_b32 s{sMB}, s{sWV}, 1"); e(f"s_lshr_b32 s{sKI}, s{sWV}, 1")
e(f"s_mul_i32 s{sLB}, s{sKI}, 81920")
e(f"v_lshrrev_b32 v{vT0}, 2, v{vL}"); e(f"v_mul_u32_u24 v{vWo}, 7168, v{vT0}")
e(f"v_lshrrev_b32 v{vT0}, 4, v{vL}"); e(f"v_and_b32 v{vT0}, 2, v{vT0}")
e(f"v_and_b32 v{vT1}, 3, v{vL}"); e(f"v_xor_b32 v{vT0}, v{vT0}, v{vT1}")
e(f"v_lshl_add_u32 v{vWo}, v{vT0}, 4, v{vWo}")
e(f"s_mul_i32 s{sTmp}, s{sJ}, 14"); e(f"s_add_u32 s{sTmp}, s{sTmp}, s{sT}")
e(f"s_lshl_b32 s{sOff}, s{sTmp}, 6"); e(f"s_mul_i32 s{sTmp2}, s{sKI}, {512*7168}")
e(f"s_add_u32 s{sOff}, s{sOff}, s{sTmp2}")
e(f"s_lshl_b32 s{sM0}, s{sMB}, 15"); e(f"s_add_u32 s{sM0}, s{sM0}, s{sLB}")
e(f"s_lshl_b32 s{sTmp2}, s{sMI}, 1"); e(f"s_add_u32 s{sTmp2}, s{sTmp2}, s{sMB}")
e(f"s_mul_i32 s{sCnt}, s{sTmp2}, 112"); e(f"s_add_u32 s{sTmp}, s{sTmp}, s{sCnt}")
e(f"s_lshl_b32 s{sTmp}, s{sTmp}, 1"); e(f"s_add_u32 s{sTmp}, s{sTmp}, s{sKI}"); e(f"s_lshl_b32 s{sTmp}, s{sTmp}, 9")
e(f"v_and_b32 v{vT0}, 31, v{vL}"); e(f"v_lshl_add_u32 v{vHs}, v{vT0}, 4, s{sTmp}")
e(f"s_mul_i32 s{sTmp}, s{sJ}, 14"); e(f"s_add_u32 s{sCnt}, s{sCnt}, s{sTmp}")
e(f"s_mul_i32 s{sTmp}, s{sKI}, 7"); e(f"s_add_u32 s{sCnt}, s{sCnt}, s{sTmp}"); e(f"s_lshl_b32 s{sCnt}, s{sCnt}, 10")
e(f"v_lshl_add_u32 v{vHo}, v{vL}, 4, s{sCnt}")
e(f"s_lshl_b32 s{sTmp2}, s{sTmp2}, 15"); e(f"s_lshl_b32 s{sTmp}, s{sKI}, 10"); e(f"s_add_u32 s{sTmp2}, s{sTmp2}, s{sTmp}")
e(f"v_and_b32 v{vT0}, 15, v{vL}"); e(f"v_lshl_add_u32 v{vXo}, v{vT0}, 11, s{sTmp2}")
e(f"v_and_b32 v{vT1}, 48, v{vL}"); e(f"v_add_u32 v{vXo}, v{vXo}, v{vT1}")
e(f"s_lshl_b32 s{sTmp}, s{sI}, 3"); e(f"s_lshl_b32 s{sTmp2}, s{sMB}, 2"); e(f"s_add_u32 s{sTmp}, s{sTmp}, s{sTmp2}")
e(f"s_lshl_b32 s{sTmp2}, s{sKI}, 1"); e(f"s_add_u32 s{sTmp}, s{sTmp}, s{sTmp2}")
e(f"s_lshl_b32 s{sTmp}, s{sTmp}, 3"); e(f"s_add_u32 s{sTmp}, s{sTmp}, s{sJ}"); e(f"s_lshl_b32 s{sTmp}, s{sTmp}, 10")
e(f"s_add_u32 s{sTmp}, s{sTmp}, {POFF}")
e(f"v_lshl_add_u32 v{vPs}, v{vL}, 4, s{sTmp}")
for r in range(4): e(f"v_mov_b32 v{vS+r}, -1")
e("s_waitcnt lgkmcnt(0)")
stamp()
srd(sWS, 60, WSSZ)
e(f"s_cmp_eq_u32 s{sMB}, 0"); e("s_cselect_b32 s46, s50, s52"); e("s_cselect_b32 s47, s51, s53")
srd(sW, 46, 7340032)
srd(sX, 48, 131072)
e(f"s_movk_i32 s{sTmp}, 0x2000")
if not opt['noreset']:
    e(f"buffer_store_dwordx4 v[{vS}:{vS+3}], v{vPs}, s[{sWS}:{sWS+3}], 0 offen sc1")
    e(f"buffer_store_dwordx4 v[{vS}:{vS+3}], v{vPs}, s[{sWS}:{sWS+3}], s{sTmp} offen sc1")
e(f"s_cmp_ge_u32 s{sI}, 28"); e("s_cbranch_scc1 L_nop1")
if not opt['noreset']: e(f"buffer_store_dwordx4 v[{vS}:{vS+3}], v{vHs}, s[{sWS}:{sWS+3}], 0 offen sc1")
q = []
def w13(n):
    e(f"s_mov_b32 m0, s{sM0}"); e(f"s_add_u32 s{sM0}, s{sM0}, 1024")
    e(f"buffer_load_dwordx4 v{vWo}, s[{sW}:{sW+3}], s{sOff} offen{nt13} lds")
    e(f"s_add_u32 s{sOff}, s{sOff}, {16*7168}")
def setup2():
    srd(sW2, 54, 7340032); srd(sO, 56, 131072); srd(sD, 58, 256)
    e(f"v_lshrrev_b32 v{vT0}, 3, v{vL}"); e(f"v_lshlrev_b32 v{vW2o}, 11, v{vT0}")
    e(f"v_and_b32 v{vT0}, 6, v{vT0}"); e(f"v_and_b32 v{vT1}, 7, v{vL}"); e(f"v_xor_b32 v{vT0}, v{vT0}, v{vT1}")
    e(f"v_lshl_add_u32 v{vW2o}, v{vT0}, 4, v{vW2o}")
    e(f"s_mul_i32 s{sW2o}, s{sJ}, 448"); e(f"s_mul_i32 s{sTmp}, s{sKI}, 224"); e(f"s_add_u32 s{sW2o}, s{sW2o}, s{sTmp}")
    e(f"s_lshl_b32 s{sTmp}, s{sMB}, 4"); e(f"s_add_u32 s{sW2o}, s{sW2o}, s{sTmp}"); e(f"s_lshl_b32 s{sW2o}, s{sW2o}, 11")
    e(f"s_lshl_b32 s{sTmp}, s{sT}, 7"); e(f"s_add_u32 s{sW2o}, s{sW2o}, s{sTmp}")
    e(f"v_lshrrev_b32 v{vT0}, 4, v{vL}"); e(f"v_lshlrev_b32 v{vRA0}, 9, v{vT0}")
    e(f"v_and_b32 v{vT0}, 1, v{vT0}"); e(f"v_lshl_add_u32 v{vRA0}, v{vT0}, 5, v{vRA0}")
    e(f"v_and_b32 v{vT0}, 12, v{vL}"); e(f"v_lshl_add_u32 v{vRA0}, v{vT0}, 4, v{vRA0}")
    e(f"v_and_b32 v{vT1}, 3, v{vL}"); e(f"v_lshl_add_u32 v{vRA0}, v{vT1}, 3, v{vRA0}")
    e(f"v_add_u32 v{vRA0}, s{sLB}, v{vRA0}"); e(f"v_xor_b32 v{vRA1}, 32, v{vRA0}")
    e(f"v_lshrrev_b32 v{vT0}, 2, v{vL}"); e(f"v_lshlrev_b32 v{vR2}, 7, v{vT0}")
    e(f"v_and_b32 v{vT0}, 6, v{vT0}"); e(f"v_lshl_add_u32 v{vR2}, v{vT0}, 4, v{vR2}")
    e(f"v_lshl_add_u32 v{vR2}, v{vT1}, 3, v{vR2}"); e(f"v_add_u32 v{vR2}, s{sLB}, v{vR2}")
    e(f"v_lshlrev_b32 v{vFl}, 2, v{vL}")
    e(f"s_lshl_b32 s{sTmp}, s{sMB}, 11"); e(f"v_lshl_add_u32 v{vSc}, v{vL}, 4, s{sTmp}")
def w2loc(s):
    return 65536 + 4096*s if s < 4 else (4096*(s-4) if s < 6 else 32768)
def w2(s):
    for p in range(2):
        e(f"s_lshl_b32 s{sTmp}, s{sMB}, 11"); e(f"s_add_u32 s{sTmp}, s{sTmp}, s{sLB}")
        e(f"s_add_u32 m0, s{sTmp}, {w2loc(s) + p*1024}")
        e(f"s_add_u32 s{sTmp2}, s{sW2o}, {(32*s + 8*p)*2048}")
        e(f"buffer_load_dwordx4 v{vW2o}, s[{sW2}:{sW2+3}], s{sTmp2} offen{nt2} lds")
        q.append('w2')
ks = 0
for c, n in enumerate(chunks):
    for s in range(ks, ks+n):
        w13(2*s); w13(2*s+1); q.extend([c, c])
    for s in range(ks, ks+n):
        if opt['nox']: continue
        e(f"buffer_load_dwordx4 v[{vX+4*s}:{vX+4*s+3}], v{vXo}, s[{sX}:{sX+3}], 0 offen offset:{64*s}"); q.append(c)
    ks += n
setup2()
if opt['w2early']:
    for s in range(4): w2(s)
stamp()
def waitfor(tag):
    last = max(i for i, t in enumerate(q) if t == tag)
    e(f"s_waitcnt vmcnt({len(q)-1-last})")
def rd1(s, buf):
    for mt in range(2):
        for fb in range(2):
            d = vB + buf*16 + (mt*2+fb)*4
            for hf in range(2):
                e(f"ds_read_b64_tr_b16 v[{d+2*hf}:{d+2*hf+1}], v{vRA1 if fb else vRA0} offset:{mt*32768 + s*2048 + hf*256}")
def setflag():
    if opt['noflag']: return
    e(f"s_cmp_lg_u32 s{sWV}, 0"); e(f"s_cbranch_scc1 L_nf{len(L)}"); lb = f"L_nf{len(L)-1}"
    e(f"v_mov_b32 v{vT0}, 1"); e(f"v_mov_b32 v{vT1}, s2"); e("s_mov_b64 exec, 1")
    e(f"buffer_store_byte v{vT0}, v{vT1}, s[{sD}:{sD+3}], 0 offen sc1"); e("s_mov_b64 exec, -1")
    lab(lb)
ks = 0
for c, n in enumerate(chunks):
    waitfor(c); e("s_barrier")
    if c == 0: stamp()
    rd1(ks, ks & 1)
    if c == 0:
        setflag()
        if not opt['w2early']:
            for s in range(4): w2(s)
    if c == 1:
        for s in range(4, 7): w2(s)
    if c == len(chunks)-1:
        e(f"buffer_load_dword v{vTmp+30}, v{vFl}, s[{sD}:{sD+3}], 0 offen sc1")
    for s in range(ks, ks+n):
        if s+1 < ks+n:
            rd1(s+1, (s+1) & 1); e("s_waitcnt lgkmcnt(8)")
        else: e("s_waitcnt lgkmcnt(0)")
        for b in range(4):
            a = vACC + 4*b; d = vB + (s & 1)*16 + b*4
            cin = "0" if s == 0 else f"v[{a}:{a+3}]"
            e(f"v_mfma_f32_16x16x32_bf16 v[{a}:{a+3}], v[{d}:{d+3}], v[{vX+4*s}:{vX+4*s+3}], {cin}")
    ks += n
stamp()
e("s_nop 7")
for mt in range(2):
    for r in range(4):
        e(f"v_permlane32_swap_b32 v{vACC+8*mt+r}, v{vACC+8*mt+4+r}")
SCR = 32768 + 4096
e(f"s_cmp_eq_u32 s{sKI}, 0"); e("s_cbranch_scc1 L_k0")
e(f"ds_write_b128 v{vSc}, v[{vACC}:{vACC+3}] offset:{SCR}"); e(f"ds_write_b128 v{vSc}, v[{vACC+8}:{vACC+11}] offset:{SCR+1024}")
for r in range(4):
    e(f"v_mov_b32 v{vTmp+r}, v{vACC+4+r}"); e(f"v_mov_b32 v{vTmp+4+r}, v{vACC+12+r}")
e("s_branch L_k1")
lab("L_k0")
e(f"v_add_u32 v{vT0}, 81920, v{vSc}")
e(f"ds_write_b128 v{vT0}, v[{vACC+4}:{vACC+7}] offset:{SCR}"); e(f"ds_write_b128 v{vT0}, v[{vACC+12}:{vACC+15}] offset:{SCR+1024}")
for r in range(4):
    e(f"v_mov_b32 v{vTmp+r}, v{vACC+r}"); e(f"v_mov_b32 v{vTmp+4+r}, v{vACC+8+r}")
lab("L_k1")
e(f"v_add_u32 v{vT0}, s{sLB}, v{vSc}")
e("s_waitcnt lgkmcnt(0)"); e("s_barrier")
e(f"ds_read_b128 v[{vTmp+8}:{vTmp+11}], v{vT0} offset:{SCR}"); e(f"ds_read_b128 v[{vTmp+12}:{vTmp+15}], v{vT0} offset:{SCR+1024}")
e("s_waitcnt lgkmcnt(1)")
G, U, T = vTmp, vTmp+4, vTmp+16
for r in range(4): e(f"v_add_f32 v{G+r}, v{G+r}, v{vTmp+8+r}")
def rnd(b):
    e(f"v_cvt_pk_bf16_f32 v{vTmp+24}, v{b}, v{b+1}"); e(f"v_cvt_pk_bf16_f32 v{vTmp+25}, v{b+2}, v{b+3}")
    e(f"v_lshlrev_b32 v{b}, 16, v{vTmp+24}"); e(f"v_and_b32 v{b+1}, 0xffff0000, v{vTmp+24}")
    e(f"v_lshlrev_b32 v{b+2}, 16, v{vTmp+25}"); e(f"v_and_b32 v{b+3}, 0xffff0000, v{vTmp+25}")
if opt['mimic']: rnd(G)
for r in range(4): e(f"v_mul_f32 v{T+r}, 0xbfb8aa3b, v{G+r}")
for r in range(4): e(f"v_exp_f32 v{T+r}, v{T+r}")
e("s_waitcnt lgkmcnt(0)")
for r in range(4): e(f"v_add_f32 v{U+r}, v{U+r}, v{vTmp+12+r}")
for r in range(4): e(f"v_add_f32 v{T+r}, 1.0, v{T+r}")
for r in range(4): e(f"v_rcp_f32 v{T+r}, v{T+r}")
if opt['mimic']: rnd(U)
else: e("s_nop 0")
for r in range(4): e(f"v_mul_f32 v{G+r}, v{G+r}, v{T+r}")
if opt['mimic']: rnd(G)
for r in range(4): e(f"v_mul_f32 v{G+r}, v{G+r}, v{U+r}")
e(f"v_cvt_pk_bf16_f32 v{T}, v{G}, v{G+1}"); e(f"v_cvt_pk_bf16_f32 v{T+1}, v{G+2}, v{G+3}")
e(f"v_min_u32 v{T}, -2, v{T}"); e(f"v_min_u32 v{T+1}, -2, v{T+1}")
e("s_nop 1")
e(f"v_permlane32_swap_b32 v{T}, v{T+2}"); e(f"v_permlane32_swap_b32 v{T+1}, v{T+3}")
e("s_mov_b32 exec_hi, 0")
e(f"buffer_store_dwordx4 v[{T}:{T+3}], v{vHs}, s[{sWS}:{sWS+3}], 0 offen sc1")
e("s_mov_b64 exec, -1")
e("s_waitcnt vmcnt(1)")
e("s_branch L_p2")
lab("L_nop1")
n0 = nst[0]; nst[0] = 2
setup2(); stamp()
for s in range(7): w2(s)
e("s_waitcnt vmcnt(14)"); e("s_barrier"); stamp()
setflag(); stamp()
e(f"v_mov_b32 v{vTmp+30}, 0")
e("s_waitcnt vmcnt(0)")
assert nst[0] == n0 or not opt['diag']
lab("L_p2")
stamp()
e("s_barrier")
e(f"s_mov_b32 s{sCnt}, 0"); e(f"s_mov_b32 s{sTmp}, 0x01010101")
lab("L_fl")
if opt['noflag']: e("s_branch L_flok")
e(f"v_cmp_ne_u32 vcc, s{sTmp}, v{vTmp+30}"); e("s_cbranch_vccz L_flok")
e(f"s_add_u32 s{sCnt}, s{sCnt}, 1"); e(f"s_cmp_gt_u32 s{sCnt}, 20000"); e("s_cbranch_scc1 L_flok")
e("s_sleep 2")
e(f"buffer_load_dword v{vTmp+30}, v{vFl}, s[{sD}:{sD+3}], 0 offen sc1"); e("s_waitcnt vmcnt(0)")
e("s_branch L_fl")
lab("L_flok")
def hload():
    for s in range(7):
        so = "0" if s < 4 else f"s{sOff}"
        e(f"buffer_load_dwordx4 v[{vH+4*s}:{vH+4*s+3}], v{vHo}, s[{sWS}:{sWS+3}], {so} offen offset:{(s%4)*1024} sc1")
e(f"s_movk_i32 s{sOff}, 0x1000")
hload()
e(f"v_add_u32 v{vR2x}, 0x10000, v{vR2}")
for nb in range(4):
    if nb:
        e(f"v_xor_b32 v{vT0}, {nb*32}, v{vR2}"); e(f"v_xor_b32 v{vT1}, {nb*32}, v{vR2x}")
    for s in range(7):
        for hf in range(2):
            d = vB2 + (s*4+nb)*4 + 2*hf
            o = w2loc(s) + hf*2048
            a = ((vT1 if nb else vR2x), o - 65536) if o >= 65536 else ((vT0 if nb else vR2), o)
            e(f"ds_read_b64_tr_b16 v[{d}:{d+1}], v{a[0]} offset:{a[1]}")
stamp()
e(f"s_mov_b32 s{sCnt}, 0")
lab("L_hp")
def chk(base, n, tgt):
    e(f"v_max3_u32 v{vT0}, v{base}, v{base+1}, v{base+2}")
    i = 3
    while i < n:
        if i+1 < n: e(f"v_max3_u32 v{vT0}, v{vT0}, v{base+i}, v{base+i+1}"); i += 2
        else: e(f"v_max_u32 v{vT0}, v{vT0}, v{base+i}"); i += 1
    e(f"v_cmp_eq_u32 vcc, -1, v{vT0}"); e(f"s_cbranch_vccz {tgt}")
    e(f"s_add_u32 s{sCnt}, s{sCnt}, 1"); e(f"s_cmp_gt_u32 s{sCnt}, 20000"); e(f"s_cbranch_scc1 {tgt}")
    if opt['sleep']: e(f"s_sleep {opt['sleep']}")
e("s_waitcnt vmcnt(0)")
chk(vH, 28, "L_hok")
hload(); e("s_branch L_hp")
lab("L_hok")
stamp()
if opt['diag']: e(f"s_mov_b32 s62, s{sCnt}")
e("s_waitcnt lgkmcnt(0)")
for s in range(7):
    for nb in range(4):
        a = vA2 + 4*nb; d = vB2 + (s*4+nb)*4
        cin = "0" if s == 0 else f"v[{a}:{a+3}]"
        e(f"v_mfma_f32_16x16x32_bf16 v[{a}:{a+3}], v[{d}:{d+3}], v[{vH+4*s}:{vH+4*s+3}], {cin}")
SC2 = 16384
e(f"s_cmp_eq_u32 s{sKI}, 0"); e("s_cbranch_scc1 L_q0")
e("s_nop 6")
e(f"ds_write_b128 v{vSc}, v[{vA2}:{vA2+3}] offset:{SC2}"); e(f"ds_write_b128 v{vSc}, v[{vA2+4}:{vA2+7}] offset:{SC2+1024}")
for r in range(8): e(f"v_mov_b32 v{vTmp+r}, v{vA2+8+r}")
e("s_branch L_q1")
lab("L_q0")
e(f"v_add_u32 v{vT0}, 81920, v{vSc}"); e("s_nop 6")
e(f"ds_write_b128 v{vT0}, v[{vA2+8}:{vA2+11}] offset:{SC2}"); e(f"ds_write_b128 v{vT0}, v[{vA2+12}:{vA2+15}] offset:{SC2+1024}")
for r in range(8): e(f"v_mov_b32 v{vTmp+r}, v{vA2+r}")
lab("L_q1")
e(f"v_add_u32 v{vT0}, s{sLB}, v{vSc}"); e(f"s_movk_i32 s{sTmp}, 0x2000")
e("s_waitcnt lgkmcnt(0)"); e("s_barrier")
e(f"ds_read_b128 v[{vTmp+8}:{vTmp+11}], v{vT0} offset:{SC2}"); e(f"ds_read_b128 v[{vTmp+12}:{vTmp+15}], v{vT0} offset:{SC2+1024}")
for h in range(2):
    e(f"s_waitcnt lgkmcnt({1-h})")
    for r in range(4): e(f"v_add_f32 v{vTmp+4*h+r}, v{vTmp+4*h+r}, v{vTmp+8+4*h+r}")
    for r in range(4): e(f"v_min_u32 v{vTmp+4*h+r}, -2, v{vTmp+4*h+r}")
    e(f"buffer_store_dwordx4 v[{vTmp+4*h}:{vTmp+4*h+3}], v{vPs}, s[{sWS}:{sWS+3}], {'s%d' % sTmp if h else 0} offen sc1")
stamp()
e(f"s_cmp_lg_u32 s{sWV}, 0"); e("s_cbranch_scc1 L_end")
e(f"s_lshl_b32 s{sTmp}, s{sI}, 3"); e(f"s_add_u32 s{sTmp}, s{sTmp}, s{sJ}"); e(f"s_lshl_b32 s{sTmp}, s{sTmp}, 13")
e(f"s_add_u32 s{sTmp}, s{sTmp}, {POFF}"); e(f"v_lshl_add_u32 v{vHo}, v{vL}, 4, s{sTmp}")
vP = 68
def pload():
    for s in range(8):
        so = "0" if s < 4 else f"s{sOff}"
        e(f"buffer_load_dwordx4 v[{vP+4*s}:{vP+4*s+3}], v{vHo}, s[{sWS}:{sWS+3}], {so} offen offset:{(s%4)*1024} sc1")
pload()
e(f"s_lshl_b32 s{sTmp}, s{sMI}, 1"); e(f"s_lshr_b32 s{sTmp2}, s{sJ}, 2"); e(f"s_add_u32 s{sTmp}, s{sTmp}, s{sTmp2}"); e(f"s_lshl_b32 s{sTmp}, s{sTmp}, 15")
e(f"s_lshl_b32 s{sTmp2}, s{sT}, 7"); e(f"s_add_u32 s{sTmp}, s{sTmp}, s{sTmp2}")
e(f"s_and_b32 s{sTmp2}, s{sJ}, 3"); e(f"s_lshl_b32 s{sTmp2}, s{sTmp2}, 5"); e(f"s_add_u32 s{sTmp}, s{sTmp}, s{sTmp2}")
e(f"v_and_b32 v{vT0}, 15, v{vL}"); e(f"v_lshl_add_u32 v{vXo}, v{vT0}, 11, s{sTmp}")
e(f"v_lshrrev_b32 v{vT0}, 4, v{vL}"); e(f"v_lshl_add_u32 v{vXo}, v{vT0}, 3, v{vXo}")
e(f"s_mov_b32 s{sCnt}, 0")
lab("L_pp")
e("s_waitcnt vmcnt(0)")
chk(vP, 32, "L_pok")
pload(); e("s_branch L_pp")
lab("L_pok")
stamp()
for st in (16, 8, 4):
    for r in range(st): e(f"v_add_f32 v{vP+r}, v{vP+r}, v{vP+st+r}")
e(f"v_cvt_pk_bf16_f32 v{vP}, v{vP}, v{vP+1}"); e(f"v_cvt_pk_bf16_f32 v{vP+1}, v{vP+2}, v{vP+3}")
e(f"buffer_store_dwordx2 v[{vP}:{vP+1}], v{vXo}, s[{sO}:{sO+3}], 0 offen")
if opt['diag']:
    e("s_waitcnt vmcnt(0)"); stamp(); e("s_waitcnt lgkmcnt(0)")
    e(f"s_lshl_b32 s{sTmp}, s2, 6"); e(f"s_add_u32 s{sTmp}, s{sTmp}, {DOFF}"); e(f"v_mov_b32 v{vT1}, s{sTmp}")
    e("s_getreg_b32 s63, hwreg(HW_REG_XCC_ID)")
    src = [sST+2*k for k in range(nst[0])] + [62, sCnt, 63]
    assert len(src) <= 16
    e("s_mov_b64 exec, 1")
    for k, s in enumerate(src):
        e(f"v_mov_b32 v{vTmp+k}, s{s}"); e(f"buffer_store_dword v{vTmp+k}, v{vT1}, s[{sWS}:{sWS+3}], 0 offen offset:{4*k}")
if opt['tk'] >= 0:
    e(f"s_add_u32 s{sTmp}, s{sST+2*opt['tk']}, 4000")
    lab("L_tk"); e("s_sleep 1"); e("s_memrealtime s[4:5]"); e("s_waitcnt lgkmcnt(0)")
    e(f"s_sub_u32 s4, s4, s{sTmp}"); e("s_cmp_lt_i32 s4, 0"); e("s_cbranch_scc1 L_tk")
lab("L_end")
e("s_endpgm")
hdr = open('cdna_kernels/' + NAME + '.s.ref').read().split('\n')
hdr = [h for h in hdr if h.startswith(';') and '@launch' not in h]
txt = '\n'.join(hdr) + f"""
; @launch grid=(256,1,1) block=(256,1,1) lds=163840
.amdgcn_target "amdgcn-amd-amdhsa--gfx950"
.text
.globl {NAME}_kernel
.p2align 8
.type {NAME}_kernel,@function
{NAME}_kernel:
""" + '\n'.join(L) + f"""
.section .rodata,"a"
.p2align 6
.amdhsa_kernel {NAME}_kernel
  .amdhsa_next_free_vgpr 256
  .amdhsa_next_free_sgpr 102
  .amdhsa_accum_offset 256
  .amdhsa_group_segment_fixed_size 0
  .amdhsa_kernarg_size 56
  .amdhsa_user_sgpr_count 2
  .amdhsa_user_sgpr_kernarg_segment_ptr 1
  .amdhsa_system_sgpr_workgroup_id_x 1
.end_amdhsa_kernel
"""
open(out, 'w').write(txt)
```

```python
import sys
opt = dict(diag=0, nt13=0, nt2=0, w2early=0, sleep=1, chunks="4,4,4,2,2", mimic=0, noreset=0, noflag=0, nox=0, tk=-1, pf=0, pfnt=0, pf2=0, mb=0, mbnt=0, mbn=3)
out = None
for a in sys.argv[1:]:
    if '=' in a:
        k, v = a.split('='); opt[k] = v if k == 'chunks' else int(v)
    else: out = a
NAME = "standalone__glu_gated_swiglu__sampling"
L = []
def e(s): L.append("    " + s)
def lab(s): L.append(s + ":")
chunks = [int(c) for c in opt['chunks'].split(',')]
assert sum(chunks) == 16 and chunks[0] >= 4
HOFF = 0
POFF = 0x80000
DOFF = 0x800000
WSSZ = 0x1000000
sX, sW, sW2, sO, sD, sWS = 8, 12, 16, 20, 24, 28
sJ, sI, sMI, sT, sWV, sMB, sKI = 32, 33, 34, 35, 36, 37, 38
sOff, sM0, sTmp, sTmp2, sCnt, sLB, sW2o = 39, 40, 41, 42, 43, 44, 45
sST = 64
vL, vWo, vXo, vRA0, vRA1, vHs, vPs, vW2o, vT0, vT1, vS = 0, 1, 2, 3, 4, 5, 6, 7, 8, 9, 12
vR2, vR2x, vFl, vHo, vSc = 10, 11, 16, 17, 18
vACC = 20
vB = 36
vX = 68
vB2 = 68
vH = 180
vA2 = 208
vTmp = 224
nst = [0]
def stamp():
    if opt['diag']:
        e(f"s_memrealtime s[{sST+2*nst[0]}:{sST+2*nst[0]+1}]"); nst[0] += 1
def srd(d, lo, size):
    e(f"s_mov_b32 s{d}, s{lo}"); e(f"s_and_b32 s{d+1}, s{lo+1}, 0xffff")
    e(f"s_mov_b32 s{d+2}, {size}"); e(f"s_mov_b32 s{d+3}, 0x20000")
nt13 = " nt" if opt['nt13'] else ""
nt2 = " nt" if opt['nt2'] else ""

e("s_cmp_ge_u32 s2, 256"); e("s_cbranch_scc1 L_end")
e("s_load_dwordx8 s[48:55], s[0:1], 0")
e("s_load_dwordx4 s[56:59], s[0:1], 32")
e("s_load_dwordx2 s[60:61], s[0:1], 48")
stamp()
e(f"v_lshrrev_b32 v{vT0}, 6, v0"); e(f"v_and_b32 v{vL}, 63, v0")
e(f"v_readfirstlane_b32 s{sWV}, v{vT0}")
e(f"s_and_b32 s{sJ}, s2, 7"); e(f"s_lshr_b32 s{sI}, s2, 3")
e(f"s_and_b32 s{sMI}, s{sI}, 1"); e(f"s_lshr_b32 s{sT}, s{sI}, 1")
e(f"s_and_b32 s{sMB}, s{sWV}, 1"); e(f"s_lshr_b32 s{sKI}, s{sWV}, 1")
e(f"s_mul_i32 s{sLB}, s{sKI}, 81920")
e(f"v_lshrrev_b32 v{vT0}, 2, v{vL}"); e(f"v_mul_u32_u24 v{vWo}, 7168, v{vT0}")
e(f"v_lshrrev_b32 v{vT0}, 4, v{vL}"); e(f"v_and_b32 v{vT0}, 2, v{vT0}")
e(f"v_and_b32 v{vT1}, 3, v{vL}"); e(f"v_xor_b32 v{vT0}, v{vT0}, v{vT1}")
e(f"v_lshl_add_u32 v{vWo}, v{vT0}, 4, v{vWo}")
e(f"s_mul_i32 s{sTmp}, s{sJ}, 14"); e(f"s_add_u32 s{sTmp}, s{sTmp}, s{sT}")
e(f"s_lshl_b32 s{sOff}, s{sTmp}, 6"); e(f"s_mul_i32 s{sTmp2}, s{sKI}, {512*7168}")
e(f"s_add_u32 s{sOff}, s{sOff}, s{sTmp2}")
e(f"s_lshl_b32 s{sM0}, s{sMB}, 15"); e(f"s_add_u32 s{sM0}, s{sM0}, s{sLB}")
e(f"s_lshl_b32 s{sTmp2}, s{sMI}, 1"); e(f"s_add_u32 s{sTmp2}, s{sTmp2}, s{sMB}")
e(f"s_mul_i32 s{sCnt}, s{sTmp2}, 112"); e(f"s_add_u32 s{sTmp}, s{sTmp}, s{sCnt}")
e(f"s_lshl_b32 s{sTmp}, s{sTmp}, 1"); e(f"s_add_u32 s{sTmp}, s{sTmp}, s{sKI}"); e(f"s_lshl_b32 s{sTmp}, s{sTmp}, 9")
e(f"v_and_b32 v{vT0}, 31, v{vL}"); e(f"v_lshl_add_u32 v{vHs}, v{vT0}, 4, s{sTmp}")
e(f"s_mul_i32 s{sTmp}, s{sJ}, 14"); e(f"s_add_u32 s{sCnt}, s{sCnt}, s{sTmp}")
e(f"s_mul_i32 s{sTmp}, s{sKI}, 7"); e(f"s_add_u32 s{sCnt}, s{sCnt}, s{sTmp}"); e(f"s_lshl_b32 s{sCnt}, s{sCnt}, 10")
e(f"v_lshl_add_u32 v{vHo}, v{vL}, 4, s{sCnt}")
e(f"s_lshl_b32 s{sTmp2}, s{sTmp2}, 15"); e(f"s_lshl_b32 s{sTmp}, s{sKI}, 10"); e(f"s_add_u32 s{sTmp2}, s{sTmp2}, s{sTmp}")
e(f"v_and_b32 v{vT0}, 15, v{vL}"); e(f"v_lshl_add_u32 v{vXo}, v{vT0}, 11, s{sTmp2}")
e(f"v_and_b32 v{vT1}, 48, v{vL}"); e(f"v_add_u32 v{vXo}, v{vXo}, v{vT1}")
e(f"s_lshl_b32 s{sTmp}, s{sI}, 3"); e(f"s_lshl_b32 s{sTmp2}, s{sMB}, 2"); e(f"s_add_u32 s{sTmp}, s{sTmp}, s{sTmp2}")
e(f"s_lshl_b32 s{sTmp2}, s{sKI}, 1"); e(f"s_add_u32 s{sTmp}, s{sTmp}, s{sTmp2}")
e(f"s_lshl_b32 s{sTmp}, s{sTmp}, 3"); e(f"s_add_u32 s{sTmp}, s{sTmp}, s{sJ}"); e(f"s_lshl_b32 s{sTmp}, s{sTmp}, 10")
e(f"s_add_u32 s{sTmp}, s{sTmp}, {POFF}")
e(f"v_lshl_add_u32 v{vPs}, v{vL}, 4, s{sTmp}")
for r in range(4): e(f"v_mov_b32 v{vS+r}, -1")
e("s_waitcnt lgkmcnt(0)")
if opt['mb']:
    mnt = " nt" if opt['mbnt'] else ""
    e(f"s_lshl_b32 s4, s2, 2"); e(f"s_add_u32 s4, s4, s{sWV}"); e("s_mul_i32 s4, s4, 7168")
    e(f"v_lshlrev_b32 v{vT0}, {4 if opt['mb']==1 else 7}, v{vL}")
    e(f"s_mul_i32 s5, s{sWV}, {21*1024}")
    if opt['mb'] == 2: e("s_mov_b32 exec_hi, 0x00ffffff")
    for m in range(opt['mbn']):
        srd(sW, 50+2*m, 7340032)
        if opt['mb'] == 2: e(f"buffer_load_dword v{vTmp+29}, v{vT0}, s[{sW}:{sW+3}], s4 offen{mnt}")
        else:
            for n in range(7):
                e(f"s_add_u32 m0, s5, {(m*7+n)*1024}"); e(f"s_add_u32 s6, s4, {n*1024}")
                e(f"buffer_load_dwordx4 v{vT0}, s[{sW}:{sW+3}], s6 offen{mnt} lds")
    e("s_mov_b32 exec_hi, -1"); e("s_waitcnt vmcnt(0)"); e("s_barrier")
stamp()
srd(sWS, 60, WSSZ)
e(f"s_cmp_eq_u32 s{sMB}, 0"); e("s_cselect_b32 s46, s50, s52"); e("s_cselect_b32 s47, s51, s53")
srd(sW, 46, 7340032)
srd(sX, 48, 131072)
if opt['pf']:
    pnt = " nt" if opt['pfnt'] else ""
    e(f"v_mul_u32_u24 v{vT0}, 37, v{vL}"); e(f"v_lshrrev_b32 v{vT0}, 8, v{vT0}")
    e(f"v_mul_u32_u24 v{vT1}, {7168-7*128}, v{vT0}"); e(f"v_lshl_add_u32 v{vT1}, v{vL}, 7, v{vT1}")
    e(f"s_lshl_b32 s{sTmp}, s{sKI}, 6"); e(f"s_add_u32 s{sTmp}, s{sTmp}, s{sI}"); e(f"s_mul_i32 s{sTmp}, s{sTmp}, {8*7168}")
    e(f"s_mul_i32 s{sTmp2}, s{sJ}, 896"); e(f"s_add_u32 s{sTmp}, s{sTmp}, s{sTmp2}"); e(f"s_add_u32 s{sTmp2}, s{sTmp}, {256*7168}")
    e("s_mov_b32 exec_hi, 0x00ffffff")
    for so in (sTmp, sTmp2):
        e(f"buffer_load_dword v{vTmp+29}, v{vT1}, s[{sW}:{sW+3}], s{so} offen{pnt}")
        if opt['pf'] == 2: e(f"buffer_load_dword v{vTmp+29}, v{vT1}, s[{sW}:{sW+3}], s{so} offen offset:64{pnt}")
    if opt['pf2']:
        srd(sW2, 54, 7340032)
        e(f"s_lshl_b32 s{sTmp}, s{sJ}, 5"); e(f"s_add_u32 s{sTmp}, s{sTmp}, s{sI}"); e(f"s_lshl_b32 s{sTmp}, s{sTmp}, 2"); e(f"s_add_u32 s{sTmp}, s{sTmp}, s{sWV}")
        e(f"s_mul_i32 s{sTmp}, s{sTmp}, 7168"); e(f"v_lshlrev_b32 v{vT1}, 7, v{vL}")
        e(f"buffer_load_dword v{vTmp+29}, v{vT1}, s[{sW2}:{sW2+3}], s{sTmp} offen{pnt}")
        if opt['pf'] == 2: e(f"buffer_load_dword v{vTmp+29}, v{vT1}, s[{sW2}:{sW2+3}], s{sTmp} offen offset:64{pnt}")
    e("s_mov_b32 exec_hi, -1")
e(f"s_movk_i32 s{sTmp}, 0x2000")
if not opt['noreset']:
    e(f"buffer_store_dwordx4 v[{vS}:{vS+3}], v{vPs}, s[{sWS}:{sWS+3}], 0 offen sc1")
    e(f"buffer_store_dwordx4 v[{vS}:{vS+3}], v{vPs}, s[{sWS}:{sWS+3}], s{sTmp} offen sc1")
e(f"s_cmp_ge_u32 s{sI}, 28"); e("s_cbranch_scc1 L_nop1")
if not opt['noreset']: e(f"buffer_store_dwordx4 v[{vS}:{vS+3}], v{vHs}, s[{sWS}:{sWS+3}], 0 offen sc1")
q = []
def w13(n):
    e(f"s_mov_b32 m0, s{sM0}"); e(f"s_add_u32 s{sM0}, s{sM0}, 1024")
    e(f"buffer_load_dwordx4 v{vWo}, s[{sW}:{sW+3}], s{sOff} offen{nt13} lds")
    e(f"s_add_u32 s{sOff}, s{sOff}, {16*7168}")
def setup2():
    srd(sW2, 54, 7340032); srd(sO, 56, 131072); srd(sD, 58, 256)
    e(f"v_lshrrev_b32 v{vT0}, 3, v{vL}"); e(f"v_lshlrev_b32 v{vW2o}, 11, v{vT0}")
    e(f"v_and_b32 v{vT0}, 6, v{vT0}"); e(f"v_and_b32 v{vT1}, 7, v{vL}"); e(f"v_xor_b32 v{vT0}, v{vT0}, v{vT1}")
    e(f"v_lshl_add_u32 v{vW2o}, v{vT0}, 4, v{vW2o}")
    e(f"s_mul_i32 s{sW2o}, s{sJ}, 448"); e(f"s_mul_i32 s{sTmp}, s{sKI}, 224"); e(f"s_add_u32 s{sW2o}, s{sW2o}, s{sTmp}")
    e(f"s_lshl_b32 s{sTmp}, s{sMB}, 4"); e(f"s_add_u32 s{sW2o}, s{sW2o}, s{sTmp}"); e(f"s_lshl_b32 s{sW2o}, s{sW2o}, 11")
    e(f"s_lshl_b32 s{sTmp}, s{sT}, 7"); e(f"s_add_u32 s{sW2o}, s{sW2o}, s{sTmp}")
    e(f"v_lshrrev_b32 v{vT0}, 4, v{vL}"); e(f"v_lshlrev_b32 v{vRA0}, 9, v{vT0}")
    e(f"v_and_b32 v{vT0}, 1, v{vT0}"); e(f"v_lshl_add_u32 v{vRA0}, v{vT0}, 5, v{vRA0}")
    e(f"v_and_b32 v{vT0}, 12, v{vL}"); e(f"v_lshl_add_u32 v{vRA0}, v{vT0}, 4, v{vRA0}")
    e(f"v_and_b32 v{vT1}, 3, v{vL}"); e(f"v_lshl_add_u32 v{vRA0}, v{vT1}, 3, v{vRA0}")
    e(f"v_add_u32 v{vRA0}, s{sLB}, v{vRA0}"); e(f"v_xor_b32 v{vRA1}, 32, v{vRA0}")
    e(f"v_lshrrev_b32 v{vT0}, 2, v{vL}"); e(f"v_lshlrev_b32 v{vR2}, 7, v{vT0}")
    e(f"v_and_b32 v{vT0}, 6, v{vT0}"); e(f"v_lshl_add_u32 v{vR2}, v{vT0}, 4, v{vR2}")
    e(f"v_lshl_add_u32 v{vR2}, v{vT1}, 3, v{vR2}"); e(f"v_add_u32 v{vR2}, s{sLB}, v{vR2}")
    e(f"v_lshlrev_b32 v{vFl}, 2, v{vL}")
    e(f"s_lshl_b32 s{sTmp}, s{sMB}, 11"); e(f"v_lshl_add_u32 v{vSc}, v{vL}, 4, s{sTmp}")
def w2loc(s):
    return 65536 + 4096*s if s < 4 else (4096*(s-4) if s < 6 else 32768)
def w2(s):
    for p in range(2):
        e(f"s_lshl_b32 s{sTmp}, s{sMB}, 11"); e(f"s_add_u32 s{sTmp}, s{sTmp}, s{sLB}")
        e(f"s_add_u32 m0, s{sTmp}, {w2loc(s) + p*1024}")
        e(f"s_add_u32 s{sTmp2}, s{sW2o}, {(32*s + 8*p)*2048}")
        e(f"buffer_load_dwordx4 v{vW2o}, s[{sW2}:{sW2+3}], s{sTmp2} offen{nt2} lds")
        q.append('w2')
ks = 0
for c, n in enumerate(chunks):
    for s in range(ks, ks+n):
        w13(2*s); w13(2*s+1); q.extend([c, c])
    for s in range(ks, ks+n):
        if opt['nox']: continue
        e(f"buffer_load_dwordx4 v[{vX+4*s}:{vX+4*s+3}], v{vXo}, s[{sX}:{sX+3}], 0 offen offset:{64*s}"); q.append(c)
    ks += n
setup2()
if opt['w2early']:
    for s in range(4): w2(s)
stamp()
def waitfor(tag):
    last = max(i for i, t in enumerate(q) if t == tag)
    e(f"s_waitcnt vmcnt({len(q)-1-last})")
def rd1(s, buf):
    for mt in range(2):
        for fb in range(2):
            d = vB + buf*16 + (mt*2+fb)*4
            for hf in range(2):
                e(f"ds_read_b64_tr_b16 v[{d+2*hf}:{d+2*hf+1}], v{vRA1 if fb else vRA0} offset:{mt*32768 + s*2048 + hf*256}")
def setflag():
    if opt['noflag']: return
    e(f"s_cmp_lg_u32 s{sWV}, 0"); e(f"s_cbranch_scc1 L_nf{len(L)}"); lb = f"L_nf{len(L)-1}"
    e(f"v_mov_b32 v{vT0}, 1"); e(f"v_mov_b32 v{vT1}, s2"); e("s_mov_b64 exec, 1")
    e(f"buffer_store_byte v{vT0}, v{vT1}, s[{sD}:{sD+3}], 0 offen sc1"); e("s_mov_b64 exec, -1")
    lab(lb)
ks = 0
for c, n in enumerate(chunks):
    waitfor(c); e("s_barrier")
    if c == 0: stamp()
    rd1(ks, ks & 1)
    if c == 0:
        setflag()
        if not opt['w2early']:
            for s in range(4): w2(s)
    if c == 1:
        for s in range(4, 7): w2(s)
    if c == len(chunks)-1:
        e(f"buffer_load_dword v{vTmp+30}, v{vFl}, s[{sD}:{sD+3}], 0 offen sc1")
    for s in range(ks, ks+n):
        if s+1 < ks+n:
            rd1(s+1, (s+1) & 1); e("s_waitcnt lgkmcnt(8)")
        else: e("s_waitcnt lgkmcnt(0)")
        for b in range(4):
            a = vACC + 4*b; d = vB + (s & 1)*16 + b*4
            cin = "0" if s == 0 else f"v[{a}:{a+3}]"
            e(f"v_mfma_f32_16x16x32_bf16 v[{a}:{a+3}], v[{d}:{d+3}], v[{vX+4*s}:{vX+4*s+3}], {cin}")
    ks += n
stamp()
e("s_nop 7")
for mt in range(2):
    for r in range(4):
        e(f"v_permlane32_swap_b32 v{vACC+8*mt+r}, v{vACC+8*mt+4+r}")
SCR = 32768 + 4096
e(f"s_cmp_eq_u32 s{sKI}, 0"); e("s_cbranch_scc1 L_k0")
e(f"ds_write_b128 v{vSc}, v[{vACC}:{vACC+3}] offset:{SCR}"); e(f"ds_write_b128 v{vSc}, v[{vACC+8}:{vACC+11}] offset:{SCR+1024}")
for r in range(4):
    e(f"v_mov_b32 v{vTmp+r}, v{vACC+4+r}"); e(f"v_mov_b32 v{vTmp+4+r}, v{vACC+12+r}")
e("s_branch L_k1")
lab("L_k0")
e(f"v_add_u32 v{vT0}, 81920, v{vSc}")
e(f"ds_write_b128 v{vT0}, v[{vACC+4}:{vACC+7}] offset:{SCR}"); e(f"ds_write_b128 v{vT0}, v[{vACC+12}:{vACC+15}] offset:{SCR+1024}")
for r in range(4):
    e(f"v_mov_b32 v{vTmp+r}, v{vACC+r}"); e(f"v_mov_b32 v{vTmp+4+r}, v{vACC+8+r}")
lab("L_k1")
e(f"v_add_u32 v{vT0}, s{sLB}, v{vSc}")
e("s_waitcnt lgkmcnt(0)"); e("s_barrier")
e(f"ds_read_b128 v[{vTmp+8}:{vTmp+11}], v{vT0} offset:{SCR}"); e(f"ds_read_b128 v[{vTmp+12}:{vTmp+15}], v{vT0} offset:{SCR+1024}")
e("s_waitcnt lgkmcnt(1)")
G, U, T = vTmp, vTmp+4, vTmp+16
for r in range(4): e(f"v_add_f32 v{G+r}, v{G+r}, v{vTmp+8+r}")
def rnd(b):
    e(f"v_cvt_pk_bf16_f32 v{vTmp+24}, v{b}, v{b+1}"); e(f"v_cvt_pk_bf16_f32 v{vTmp+25}, v{b+2}, v{b+3}")
    e(f"v_lshlrev_b32 v{b}, 16, v{vTmp+24}"); e(f"v_and_b32 v{b+1}, 0xffff0000, v{vTmp+24}")
    e(f"v_lshlrev_b32 v{b+2}, 16, v{vTmp+25}"); e(f"v_and_b32 v{b+3}, 0xffff0000, v{vTmp+25}")
if opt['mimic']: rnd(G)
for r in range(4): e(f"v_mul_f32 v{T+r}, 0xbfb8aa3b, v{G+r}")
for r in range(4): e(f"v_exp_f32 v{T+r}, v{T+r}")
e("s_waitcnt lgkmcnt(0)")
for r in range(4): e(f"v_add_f32 v{U+r}, v{U+r}, v{vTmp+12+r}")
for r in range(4): e(f"v_add_f32 v{T+r}, 1.0, v{T+r}")
for r in range(4): e(f"v_rcp_f32 v{T+r}, v{T+r}")
if opt['mimic']: rnd(U)
else: e("s_nop 0")
for r in range(4): e(f"v_mul_f32 v{G+r}, v{G+r}, v{T+r}")
if opt['mimic']: rnd(G)
for r in range(4): e(f"v_mul_f32 v{G+r}, v{G+r}, v{U+r}")
e(f"v_cvt_pk_bf16_f32 v{T}, v{G}, v{G+1}"); e(f"v_cvt_pk_bf16_f32 v{T+1}, v{G+2}, v{G+3}")
e(f"v_min_u32 v{T}, -2, v{T}"); e(f"v_min_u32 v{T+1}, -2, v{T+1}")
e("s_nop 1")
e(f"v_permlane32_swap_b32 v{T}, v{T+2}"); e(f"v_permlane32_swap_b32 v{T+1}, v{T+3}")
e("s_mov_b32 exec_hi, 0")
e(f"buffer_store_dwordx4 v[{T}:{T+3}], v{vHs}, s[{sWS}:{sWS+3}], 0 offen sc1")
e("s_mov_b64 exec, -1")
e("s_waitcnt vmcnt(1)")
e("s_branch L_p2")
lab("L_nop1")
n0 = nst[0]; nst[0] = 2
setup2(); stamp()
for s in range(7): w2(s)
e("s_waitcnt vmcnt(14)"); e("s_barrier"); stamp()
setflag(); stamp()
e(f"v_mov_b32 v{vTmp+30}, 0")
e("s_waitcnt vmcnt(0)")
assert nst[0] == n0 or not opt['diag']
lab("L_p2")
stamp()
e("s_barrier")
e(f"s_mov_b32 s{sCnt}, 0"); e(f"s_mov_b32 s{sTmp}, 0x01010101")
lab("L_fl")
if opt['noflag']: e("s_branch L_flok")
e(f"v_cmp_ne_u32 vcc, s{sTmp}, v{vTmp+30}"); e("s_cbranch_vccz L_flok")
e(f"s_add_u32 s{sCnt}, s{sCnt}, 1"); e(f"s_cmp_gt_u32 s{sCnt}, 20000"); e("s_cbranch_scc1 L_flok")
e("s_sleep 2")
e(f"buffer_load_dword v{vTmp+30}, v{vFl}, s[{sD}:{sD+3}], 0 offen sc1"); e("s_waitcnt vmcnt(0)")
e("s_branch L_fl")
lab("L_flok")
def hload():
    for s in range(7):
        so = "0" if s < 4 else f"s{sOff}"
        e(f"buffer_load_dwordx4 v[{vH+4*s}:{vH+4*s+3}], v{vHo}, s[{sWS}:{sWS+3}], {so} offen offset:{(s%4)*1024} sc1")
e(f"s_movk_i32 s{sOff}, 0x1000")
hload()
e(f"v_add_u32 v{vR2x}, 0x10000, v{vR2}")
for nb in range(4):
    if nb:
        e(f"v_xor_b32 v{vT0}, {nb*32}, v{vR2}"); e(f"v_xor_b32 v{vT1}, {nb*32}, v{vR2x}")
    for s in range(7):
        for hf in range(2):
            d = vB2 + (s*4+nb)*4 + 2*hf
            o = w2loc(s) + hf*2048
            a = ((vT1 if nb else vR2x), o - 65536) if o >= 65536 else ((vT0 if nb else vR2), o)
            e(f"ds_read_b64_tr_b16 v[{d}:{d+1}], v{a[0]} offset:{a[1]}")
stamp()
e(f"s_mov_b32 s{sCnt}, 0")
lab("L_hp")
def chk(base, n, tgt):
    e(f"v_max3_u32 v{vT0}, v{base}, v{base+1}, v{base+2}")
    i = 3
    while i < n:
        if i+1 < n: e(f"v_max3_u32 v{vT0}, v{vT0}, v{base+i}, v{base+i+1}"); i += 2
        else: e(f"v_max_u32 v{vT0}, v{vT0}, v{base+i}"); i += 1
    e(f"v_cmp_eq_u32 vcc, -1, v{vT0}"); e(f"s_cbranch_vccz {tgt}")
    e(f"s_add_u32 s{sCnt}, s{sCnt}, 1"); e(f"s_cmp_gt_u32 s{sCnt}, 20000"); e(f"s_cbranch_scc1 {tgt}")
    if opt['sleep']: e(f"s_sleep {opt['sleep']}")
e("s_waitcnt vmcnt(0)")
chk(vH, 28, "L_hok")
hload(); e("s_branch L_hp")
lab("L_hok")
stamp()
if opt['diag']: e(f"s_mov_b32 s62, s{sCnt}")
e("s_waitcnt lgkmcnt(0)")
for s in range(7):
    for nb in range(4):
        a = vA2 + 4*nb; d = vB2 + (s*4+nb)*4
        cin = "0" if s == 0 else f"v[{a}:{a+3}]"
        e(f"v_mfma_f32_16x16x32_bf16 v[{a}:{a+3}], v[{d}:{d+3}], v[{vH+4*s}:{vH+4*s+3}], {cin}")
SC2 = 16384
e(f"s_cmp_eq_u32 s{sKI}, 0"); e("s_cbranch_scc1 L_q0")
e("s_nop 6")
e(f"ds_write_b128 v{vSc}, v[{vA2}:{vA2+3}] offset:{SC2}"); e(f"ds_write_b128 v{vSc}, v[{vA2+4}:{vA2+7}] offset:{SC2+1024}")
for r in range(8): e(f"v_mov_b32 v{vTmp+r}, v{vA2+8+r}")
e("s_branch L_q1")
lab("L_q0")
e(f"v_add_u32 v{vT0}, 81920, v{vSc}"); e("s_nop 6")
e(f"ds_write_b128 v{vT0}, v[{vA2+8}:{vA2+11}] offset:{SC2}"); e(f"ds_write_b128 v{vT0}, v[{vA2+12}:{vA2+15}] offset:{SC2+1024}")
for r in range(8): e(f"v_mov_b32 v{vTmp+r}, v{vA2+r}")
lab("L_q1")
e(f"v_add_u32 v{vT0}, s{sLB}, v{vSc}"); e(f"s_movk_i32 s{sTmp}, 0x2000")
e("s_waitcnt lgkmcnt(0)"); e("s_barrier")
e(f"ds_read_b128 v[{vTmp+8}:{vTmp+11}], v{vT0} offset:{SC2}"); e(f"ds_read_b128 v[{vTmp+12}:{vTmp+15}], v{vT0} offset:{SC2+1024}")
for h in range(2):
    e(f"s_waitcnt lgkmcnt({1-h})")
    for r in range(4): e(f"v_add_f32 v{vTmp+4*h+r}, v{vTmp+4*h+r}, v{vTmp+8+4*h+r}")
    for r in range(4): e(f"v_min_u32 v{vTmp+4*h+r}, -2, v{vTmp+4*h+r}")
    e(f"buffer_store_dwordx4 v[{vTmp+4*h}:{vTmp+4*h+3}], v{vPs}, s[{sWS}:{sWS+3}], {'s%d' % sTmp if h else 0} offen sc1")
stamp()
e(f"s_cmp_lg_u32 s{sWV}, 0"); e("s_cbranch_scc1 L_end")
e(f"s_lshl_b32 s{sTmp}, s{sI}, 3"); e(f"s_add_u32 s{sTmp}, s{sTmp}, s{sJ}"); e(f"s_lshl_b32 s{sTmp}, s{sTmp}, 13")
e(f"s_add_u32 s{sTmp}, s{sTmp}, {POFF}"); e(f"v_lshl_add_u32 v{vHo}, v{vL}, 4, s{sTmp}")
vP = 68
def pload():
    for s in range(8):
        so = "0" if s < 4 else f"s{sOff}"
        e(f"buffer_load_dwordx4 v[{vP+4*s}:{vP+4*s+3}], v{vHo}, s[{sWS}:{sWS+3}], {so} offen offset:{(s%4)*1024} sc1")
pload()
e(f"s_lshl_b32 s{sTmp}, s{sMI}, 1"); e(f"s_lshr_b32 s{sTmp2}, s{sJ}, 2"); e(f"s_add_u32 s{sTmp}, s{sTmp}, s{sTmp2}"); e(f"s_lshl_b32 s{sTmp}, s{sTmp}, 15")
e(f"s_lshl_b32 s{sTmp2}, s{sT}, 7"); e(f"s_add_u32 s{sTmp}, s{sTmp}, s{sTmp2}")
e(f"s_and_b32 s{sTmp2}, s{sJ}, 3"); e(f"s_lshl_b32 s{sTmp2}, s{sTmp2}, 5"); e(f"s_add_u32 s{sTmp}, s{sTmp}, s{sTmp2}")
e(f"v_and_b32 v{vT0}, 15, v{vL}"); e(f"v_lshl_add_u32 v{vXo}, v{vT0}, 11, s{sTmp}")
e(f"v_lshrrev_b32 v{vT0}, 4, v{vL}"); e(f"v_lshl_add_u32 v{vXo}, v{vT0}, 3, v{vXo}")
e(f"s_mov_b32 s{sCnt}, 0")
lab("L_pp")
e("s_waitcnt vmcnt(0)")
chk(vP, 32, "L_pok")
pload(); e("s_branch L_pp")
lab("L_pok")
stamp()
for st in (16, 8, 4):
    for r in range(st): e(f"v_add_f32 v{vP+r}, v{vP+r}, v{vP+st+r}")
e(f"v_cvt_pk_bf16_f32 v{vP}, v{vP}, v{vP+1}"); e(f"v_cvt_pk_bf16_f32 v{vP+1}, v{vP+2}, v{vP+3}")
e(f"buffer_store_dwordx2 v[{vP}:{vP+1}], v{vXo}, s[{sO}:{sO+3}], 0 offen")
if opt['diag']:
    e("s_waitcnt vmcnt(0)"); stamp(); e("s_waitcnt lgkmcnt(0)")
    e(f"s_lshl_b32 s{sTmp}, s2, 6"); e(f"s_add_u32 s{sTmp}, s{sTmp}, {DOFF}"); e(f"v_mov_b32 v{vT1}, s{sTmp}")
    e("s_getreg_b32 s63, hwreg(HW_REG_XCC_ID)")
    src = [sST+2*k for k in range(nst[0])] + [62, sCnt, 63]
    assert len(src) <= 16
    e("s_mov_b64 exec, 1")
    for k, s in enumerate(src):
        e(f"v_mov_b32 v{vTmp+k}, s{s}"); e(f"buffer_store_dword v{vTmp+k}, v{vT1}, s[{sWS}:{sWS+3}], 0 offen offset:{4*k}")
if opt['tk'] >= 0:
    e(f"s_add_u32 s{sTmp}, s{sST+2*opt['tk']}, 4000")
    lab("L_tk"); e("s_sleep 1"); e("s_memrealtime s[4:5]"); e("s_waitcnt lgkmcnt(0)")
    e(f"s_sub_u32 s4, s4, s{sTmp}"); e("s_cmp_lt_i32 s4, 0"); e("s_cbranch_scc1 L_tk")
lab("L_end")
e("s_endpgm")
hdr = open('cdna_kernels/' + NAME + '.s.ref').read().split('\n')
hdr = [h for h in hdr if h.startswith(';') and '@launch' not in h]
txt = '\n'.join(hdr) + f"""
; @launch grid=(256,1,1) block=(256,1,1) lds=163840
.amdgcn_target "amdgcn-amd-amdhsa--gfx950"
.text
.globl {NAME}_kernel
.p2align 8
.type {NAME}_kernel,@function
{NAME}_kernel:
""" + '\n'.join(L) + f"""
.section .rodata,"a"
.p2align 6
.amdhsa_kernel {NAME}_kernel
  .amdhsa_next_free_vgpr 256
  .amdhsa_next_free_sgpr 102
  .amdhsa_accum_offset 256
  .amdhsa_group_segment_fixed_size 0
  .amdhsa_kernarg_size 56
  .amdhsa_user_sgpr_count 2
  .amdhsa_user_sgpr_kernarg_segment_ptr 1
  .amdhsa_system_sgpr_workgroup_id_x 1
.end_amdhsa_kernel
"""
open(out, 'w').write(txt)
```

```python
import sys
opt = dict(diag=0, sleep=1, tk=-1, pfn=1, flu=6, late=1, slowat=12, loc=1, ipf=0, pfx=0, pfc=1, cls=3, vrot=0, dot=0, pfv=1, red4=1, rdepth=1, vm=1, ntv=0, ntw=0, rsl=20, rs2=0, bearly=0, mo=7, ps=0, os=0, mp=0, st=7, vg=0,
  sched="W0.X0.W1.X1.B.W2.X2.B.W3.X3.W4.B.X4.W5.B.X5.W6.B.X6.W7.B.X7.V4.B.B")
out = None
for a in sys.argv[1:]:
    if '=' in a:
        k, v = a.split('='); opt[k] = v if k == 'sched' else int(v)
    else: out = a
NAME = "standalone__glu_gated_swiglu__sampling"
L = []
def e(s): L.append("    " + s)
def lab(s): L.append(s + ":")
POFF = 0x200000; BOFF = 896*1024; FOFF = 0x500000; EOFF = 0x400000; DOFF = 0x800000; WSSZ = 0x1000000
sX, sW, sW2, sO, sD, sWS = 8, 12, 16, 20, 24, 28
sJ, sI, sMI, sT, sWV, sMB, sKI = 32, 33, 34, 35, 36, 37, 38
sOff, sXo, sTmp, sTmp2, sCnt, sL, sW2o, sMT, sFl, sNo = 39, 40, 41, 42, 43, 44, 45, 3, 4, 5
sST = 64
vL, vWo, vXo, vHs, vPs, vW2o, vT0, vT1, vHo, vSc = 0, 1, 2, 5, 6, 7, 8, 9, 10, 11
vRW, vRX, vR2 = 12, 18, 24
vACC, vB, vB2, vH, vU, vA2, vTmp = 32, 64, 64, 176, 204, 232, 40
if opt['vg']: vH, vU, vA2 = 152, 168, 184
nst = [0]
def stamp():
    if opt['diag']:
        e(f"s_memrealtime s[{sST+2*nst[0]}:{sST+2*nst[0]+1}]"); nst[0] += 1
def srd(d, lo, size):
    e(f"s_mov_b32 s{d}, s{lo}"); e(f"s_and_b32 s{d+1}, s{lo+1}, 0xffff")
    e(f"s_mov_b32 s{d+2}, {size}"); e(f"s_mov_b32 s{d+3}, 0x20000")
XB = 98304
def w2loc(ki, s):
    return XB + ki*4096 if s == 0 else 32768 + (s-1)*8192 + ki*4096
def w2need(s): return 1 if s == 0 else 3 + (s-1)//2
SC2 = XB + 8192
sU, NOFF = 90, XB + 32768
vSw = 3
SW = [3, 4, 22]
def redaddr():
    e(f"s_lshl_b32 s{sTmp}, s{sI}, 3"); e(f"s_add_u32 s{sTmp}, s{sTmp}, s{sJ}"); e(f"s_lshl_b32 s{sTmp}, s{sTmp}, 13")
    e(f"s_add_u32 s{sTmp}, s{sTmp}, {POFF}"); e(f"s_lshl_b32 s{sTmp2}, s{sWV}, 8"); e(f"s_add_u32 s{sTmp}, s{sTmp}, s{sTmp2}")
    e(f"v_and_b32 v{vT0}, 15, v{vL}"); e(f"v_lshl_add_u32 v{16}, v{vT0}, 4, s{sTmp}"); e(f"v_lshrrev_b32 v{vT0}, 4, v{vL}"); e(f"v_lshl_add_u32 v{16}, v{vT0}, 10, v{16}")
    e(f"s_lshl_b32 s{sTmp}, s{sMI}, 1"); e(f"s_lshr_b32 s{sTmp2}, s{sJ}, 2"); e(f"s_add_u32 s{sTmp}, s{sTmp}, s{sTmp2}"); e(f"s_lshl_b32 s{sTmp}, s{sTmp}, 15")
    e(f"s_lshl_b32 s{sTmp2}, s{sT}, 7"); e(f"s_add_u32 s{sTmp}, s{sTmp}, s{sTmp2}")
    e(f"s_and_b32 s{sTmp2}, s{sJ}, 3"); e(f"s_lshl_b32 s{sTmp2}, s{sTmp2}, 5"); e(f"s_add_u32 s{sTmp}, s{sTmp}, s{sTmp2}")
    e(f"v_and_b32 v{vT0}, 15, v{vL}"); e(f"v_lshl_add_u32 v{17}, v{vT0}, 11, s{sTmp}")
    e(f"v_lshrrev_b32 v{vT0}, 5, v{vL}"); e(f"v_lshl_add_u32 v{17}, v{vT0}, 2, v{17}"); e(f"v_lshl_add_u32 v{17}, s{sWV}, 3, v{17}")
    e("s_movk_i32 s93, 0x1000"); srd(sO, 56, 131072)
def setupc(role):
    e(f"s_mov_b32 s94, {BOFF}"); e(f"s_mov_b32 s95, {FOFF}"); e(f"s_mov_b32 s96, {BOFF + 448*1024}"); e(f"s_mov_b32 s97, {FOFF + 448*512}")
    e(f"s_mov_b32 s{sU}, {448*1024}"); e(f"s_lshl_b32 s91, s{sKI}, 1")
    e(f"s_lshl_b32 s{sTmp2}, s{sMI}, 1"); e(f"s_add_u32 s{sTmp2}, s{sTmp2}, s{sMB}"); e(f"s_mul_i32 s{sTmp2}, s{sTmp2}, 112")
    e(f"s_lshl_b32 s{sTmp}, s{sJ}, 1"); e(f"s_add_u32 s{sTmp}, s{sTmp}, s{sKI}"); e(f"s_mul_i32 s{sTmp}, s{sTmp}, 7")
    e(f"s_add_u32 s{sTmp}, s{sTmp}, s{sTmp2}"); e(f"s_add_u32 s{sTmp}, s{sTmp}, {0 if role else 4}")
    e(f"s_lshl_b32 s{sTmp}, s{sTmp}, 10"); e(f"v_lshl_add_u32 v{vHo}, v{vL}, 4, s{sTmp}")
    e(f"s_lshl_b32 s92, s{sMB}, 2"); e("s_add_u32 s92, s92, s91")
    e(f"s_lshl_b32 s{sTmp}, s{sI}, 3"); e(f"s_add_u32 s{sTmp}, s{sTmp}, s92")
    e(f"s_lshl_b32 s{sTmp}, s{sTmp}, 3"); e(f"s_add_u32 s{sTmp}, s{sTmp}, s{sJ}"); e(f"s_lshl_b32 s{sTmp}, s{sTmp}, 10")
    e(f"s_add_u32 s{sTmp}, s{sTmp}, {POFF}"); e(f"v_lshl_add_u32 v{vPs}, v{vL}, 4, s{sTmp}")
    e(f"v_and_b32 v{vT1}, 3, v{vL}")
    e(f"v_lshrrev_b32 v{vT0}, 2, v{vL}"); e(f"v_lshlrev_b32 v{vR2}, 7, v{vT0}")
    e(f"v_and_b32 v{vT0}, 6, v{vT0}"); e(f"v_lshl_add_u32 v{vR2}, v{vT0}, 4, v{vR2}"); e(f"v_lshl_add_u32 v{vR2}, v{vT1}, 3, v{vR2}")
    e(f"s_lshl_b32 s{sTmp}, s91, 5"); e(f"v_xor_b32 v{vR2}, s{sTmp}, v{vR2}")
    e(f"s_lshl_b32 s{sTmp}, s{sKI}, 12"); e(f"s_add_u32 s{sTmp}, s{sTmp}, {32768 if role else 32768+3*8192}"); e(f"v_add_u32 v{vR2}, s{sTmp}, v{vR2}")
    for k in range(1, 4): e(f"v_xor_b32 v{vR2+k}, {32*k}, v{vR2}")
    if role:
        for k in range(4): e(f"v_add_u32 v{vR2+4+k}, 0x10000, v{vR2+k}")
    for a in (0, 2):
        e(f"s_xor_b32 s{sTmp}, s92, {a}"); e(f"s_mul_i32 s{sTmp}, s{sTmp}, 3072"); e(f"s_add_u32 s{sTmp}, s{sTmp}, {SC2}")
        e(f"v_lshl_add_u32 v{SW[0] if a else vSc}, v{vL}, 4, s{sTmp}")
    if not role: redaddr()
    e(f"v_mov_b32 v23, {NOFF}")
e("s_cmp_ge_u32 s2, 256"); e("s_cbranch_scc1 L_end")
if opt.get('scr'): e("s_lshr_b32 s3, s2, 3"); e("s_and_b32 s3, s3, 7"); e("s_xor_b32 s2, s2, s3")
e("s_load_dwordx8 s[48:55], s[0:1], 0")
e("s_load_dwordx4 s[56:59], s[0:1], 32")
e("s_load_dwordx2 s[60:61], s[0:1], 48")
stamp()
e(f"v_lshrrev_b32 v{vT0}, 6, v0"); e(f"v_and_b32 v{vL}, 63, v0")
e(f"v_readfirstlane_b32 s{sTmp}, v{vT0}")
e(f"s_and_b32 s{sJ}, s2, 7"); e(f"s_lshr_b32 s{sI}, s2, 3")
e(f"s_and_b32 s{sMI}, s{sI}, 1"); e(f"s_lshr_b32 s{sT}, s{sI}, 1"); e(f"s_and_b32 s{sMT}, s{sT}, 1")
e(f"s_and_b32 s{sWV}, s{sTmp}, 3"); e(f"s_and_b32 s{sMB}, s{sWV}, 1"); e(f"s_lshr_b32 s{sKI}, s{sWV}, 1")
e(f"s_lshr_b32 s{sCnt}, s{sI}, 2"); e(f"s_mul_i32 s{sTmp2}, s{sJ}, 7"); e(f"s_add_u32 s{sCnt}, s{sCnt}, s{sTmp2}")
e(f"s_cmp_ge_u32 s{sTmp}, 4"); e("s_cbranch_scc1 L_comp")
e(f"s_lshl_b32 s{sL}, s{sWV}, 10"); e(f"s_xor_b32 s6, s{sMI}, s{sMT}")
e(f"v_lshrrev_b32 v{vT0}, 3, v{vL}"); e(f"v_mul_u32_u24 v{vWo}, 7168, v{vT0}")
e(f"v_and_b32 v{vT0}, 2, v{vT0}"); e(f"v_lshl_or_b32 v{vT0}, s{sMB}, 2, v{vT0}")
e(f"v_and_b32 v{vT1}, 7, v{vL}"); e(f"v_xor_b32 v{vT0}, v{vT0}, v{vT1}")
e(f"v_lshl_add_u32 v{vWo}, v{vT0}, 4, v{vWo}")
e(f"s_lshl_b32 s{sOff}, s{sCnt}, 7"); e(f"s_lshl_b32 s{sTmp}, s6, 6"); e(f"s_add_u32 s{sTmp}, s{sTmp}, s{sWV}")
e(f"s_mul_i32 s{sTmp}, s{sTmp}, {8*7168}"); e(f"s_add_u32 s{sOff}, s{sOff}, s{sTmp}")
def setupx():
    e(f"v_lshrrev_b32 v{vT0}, 4, v{vL}"); e(f"v_lshl_or_b32 v{vT0}, s{sWV}, 2, v{vT0}")
    e(f"v_and_b32 v{vT1}, 15, v{vL}"); e(f"v_xor_b32 v{vT1}, v{vT0}, v{vT1}")
    e(f"v_lshlrev_b32 v{vXo}, 11, v{vT0}"); e(f"v_lshl_add_u32 v{vXo}, v{vT1}, 4, v{vXo}")
    e(f"s_lshl_b32 s{sXo}, s{sMI}, 16"); e(f"s_lshl_b32 s{sTmp}, s6, 10"); e(f"s_add_u32 s{sXo}, s{sXo}, s{sTmp}"); srd(sX, 48, 131072)
def setupw2():
    e(f"v_lshrrev_b32 v{vT0}, 3, v{vL}"); e(f"v_lshlrev_b32 v{vW2o}, 11, v{vT0}")
    e(f"v_and_b32 v{vT0}, 6, v{vT0}"); e(f"v_and_b32 v{vT1}, 7, v{vL}"); e(f"v_xor_b32 v{vT0}, v{vT0}, v{vT1}")
    e(f"v_lshl_add_u32 v{vW2o}, v{vT0}, 4, v{vW2o}")
    e(f"s_mul_i32 s{sW2o}, s{sJ}, 56"); e(f"s_add_u32 s{sW2o}, s{sW2o}, s{sWV}"); e(f"s_lshl_b32 s{sW2o}, s{sW2o}, 14")
    e(f"s_lshl_b32 s{sTmp}, s{sT}, 7"); e(f"s_add_u32 s{sW2o}, s{sW2o}, s{sTmp}")
q = []
def w2m(n):
    s = n % 7
    if n == 0: e(f"s_mul_i32 s{sOff}, s{sMI}, {7*65536}"); e(f"s_add_u32 s{sOff}, s{sOff}, s{sW2o}"); e(f"s_lshl_b32 s{sXo}, s{sMI}, 12"); e(f"s_add_u32 s{sXo}, s{sXo}, s{sL}")
    if n == 7: e(f"s_xor_b32 s7, s{sMI}, 1"); e(f"s_mul_i32 s{sOff}, s7, {7*65536}"); e(f"s_add_u32 s{sOff}, s{sOff}, s{sW2o}"); e(f"s_xor_b32 s{sXo}, s{sXo}, 4096")
    e(f"s_add_u32 m0, s{sXo}, {w2loc(0, s)}"); e(f"s_add_u32 s{sTmp2}, s{sOff}, {s*65536}")
    e(f"buffer_load_dwordx4 v{vW2o}, s[{sW2}:{sW2+3}], s{sTmp2} offen{' nt' if opt['ntv'] & (1 if n < 7 else 2) else ''} lds"); q.append('V')
def w2(s):
    if opt['vm']: w2m(2*s); w2m(2*s+1); return
    for ki in range(2):
        e(f"s_add_u32 m0, s{sL}, {w2loc(ki, s)}"); e(f"s_add_u32 s{sTmp2}, s{sW2o}, {(7*ki+s)*65536}")
        e(f"buffer_load_dwordx4 v{vW2o}, s[{sW2}:{sW2+3}], s{sTmp2} offen lds"); q.append('V')
e("s_waitcnt lgkmcnt(0)")
e(f"s_cmp_ge_u32 s{sI}, 28"); e("s_cbranch_scc1 L_hld")
e(f"s_cmp_eq_u32 s{sMT}, 0"); e("s_cselect_b32 s46, s50, s52"); e("s_cselect_b32 s47, s51, s53")
srd(sW, 46, 7340032)
nb = 0; vdone = 0; sset = 0
for tok in opt['sched'].split('.'):
    if tok == 'B':
        last = max(i for i, t in enumerate(q) if t in (f"W{nb}", f"X{nb}"))
        assert f"W{nb}" in q and f"X{nb}" in q
        if nb == 0: srd(sW2, 54, 7340032); setupw2(); srd(sWS, 60, WSSZ); setupc(0)
        e(f"s_waitcnt vmcnt({len(q)-1-last})"); e("s_barrier"); nb += 1
    elif tok[0] == 'W':
        u = int(tok[1]); assert u < 6 or nb > u-5
        if u == 4: e(f"s_mul_i32 s{sTmp}, s6, {1024*7168}"); e(f"s_sub_u32 s{sOff}, s{sOff}, s{sTmp}")
        for n in range(4):
            e(f"s_add_u32 m0, s{sL}, {(u % 6)*16384 + n*4096}"); e(f"s_add_u32 s{sTmp}, s{sOff}, {(u*4+n)*32*7168}")
            e(f"buffer_load_dwordx4 v{vWo}, s[{sW}:{sW+3}], s{sTmp} offen{' nt' if opt['ntw'] & (1 if u < 4 else 2) else ''} lds"); q.append(tok)
    elif tok[0] == 'X':
        u = int(tok[1])
        if u == 0: setupx()
        if u == 4: e(f"s_lshl_b32 s{sTmp}, s6, 11"); e(f"s_sub_u32 s{sXo}, s{sXo}, s{sTmp}")
        for n in range(2):
            e(f"s_add_u32 m0, s{sL}, {XB + u*8192 + n*4096}"); e(f"s_add_u32 s{sTmp}, s{sXo}, {n*32768 + u*256}")
            e(f"buffer_load_dwordx4 v{vXo}, s[{sX}:{sX+3}], s{sTmp} offen lds"); q.append(tok)
    elif tok[0] == 'S':
        if not sset:
            sset = 1; srd(sW2, 54, 7340032); setupw2()
            e(f"s_mul_i32 s46, s{sMI}, {7*65536}"); e(f"s_add_u32 s46, s46, s{sW2o}"); e("s_add_u32 s46, s46, s54"); e("s_addc_u32 s47, s55, 0")
        for r in range(8): e(f"s_load_dword s7, s[46:47], {(int(tok[1])*32 + r)*2048}")
    elif tok[0] == 'V':
        while vdone < int(tok[1]):
            assert nb > (5 if opt['vm'] else w2need((vdone+opt['vrot'])%7)) and (not opt['vm'] or ('X7' in q and 'W7' in q)); w2((vdone+opt['vrot'])%7); vdone += 1
assert nb == 8
while vdone < 7: w2((vdone+opt['vrot'])%7); vdone += 1
e("s_waitcnt vmcnt(0)"); e("s_barrier"); e("s_branch L_p2_0")
lab("L_hld")
srd(sW2, 54, 7340032)
e(f"s_sub_u32 s{sTmp}, s{sI}, 28"); e(f"s_lshl_b32 s{sTmp}, s{sTmp}, 2"); e(f"s_add_u32 s{sTmp}, s{sTmp}, s{sWV}")
e(f"s_mul_i32 s{sTmp2}, s{sJ}, 224"); e(f"s_add_u32 s{sTmp}, s{sTmp}, s{sTmp2}"); e(f"s_lshl_b32 s{sTmp}, s{sTmp}, 12")
e(f"v_lshrrev_b32 v{vT0}, 5, v{vL}"); e(f"v_mul_u32_u24 v{vWo}, {7*65536 - 4096}, v{vT0}"); e(f"v_lshl_add_u32 v{vWo}, v{vL}, 7, v{vWo}")
e("s_barrier")
if opt['pfx']:
    srd(sX, 48, 131072)
    e(f"s_sub_u32 s{sOff}, s{sI}, 28"); e(f"s_lshl_b32 s{sOff}, s{sOff}, 2"); e(f"s_add_u32 s{sOff}, s{sOff}, s{sWV}"); e(f"s_lshl_b32 s{sOff}, s{sOff}, 13")
    e(f"v_lshlrev_b32 v{vT0}, 7, v{vL}"); e(f"buffer_load_dword v{vXo}, v{vT0}, s[{sX}:{sX+3}], s{sOff} offen")
if opt['pfc']:
    e(f"s_cmp_eq_u32 s{sMT}, 0"); e("s_cselect_b32 s46, s50, s52"); e("s_cselect_b32 s47, s51, s53"); srd(sW, 46, 7340032)
    e(f"s_add_u32 s{sOff}, s{sJ}, {opt['cls']}"); e(f"s_and_b32 s{sOff}, s{sOff}, 7"); e(f"s_cmp_eq_u32 s{sOff}, 7"); e("s_cbranch_scc1 L_npc")
    e(f"s_mul_i32 s{sXo}, s{sJ}, 7"); e(f"s_add_u32 s{sOff}, s{sOff}, s{sXo}"); e(f"s_lshl_b32 s{sOff}, s{sOff}, 7")
    e(f"s_lshl_b32 s{sXo}, s{sMI}, 3"); e(f"s_add_u32 s{sXo}, s{sXo}, s{sWV}"); e(f"s_add_u32 s{sXo}, s{sXo}, 4"); e(f"s_mul_i32 s{sXo}, s{sXo}, {64*7168}")
    e(f"s_add_u32 s{sOff}, s{sOff}, s{sXo}"); e(f"v_mul_u32_u24 v{vT0}, 7168, v{vL}")
    e(f"buffer_load_dword v{vXo}, v{vT0}, s[{sW}:{sW+3}], s{sOff} offen"); lab("L_npc")
if opt['pfv']:
    e(f"s_sub_u32 s{sOff}, s{sI}, 28"); e(f"s_lshl_b32 s{sOff}, s{sOff}, 2"); e(f"s_add_u32 s{sOff}, s{sOff}, s{sWV}"); e(f"s_mul_i32 s{sOff}, s{sOff}, 28")
    e(f"s_mul_i32 s{sXo}, s{sJ}, 448"); e(f"s_add_u32 s{sOff}, s{sOff}, s{sXo}"); e(f"s_lshl_b32 s{sOff}, s{sOff}, 11"); e(f"s_add_u32 s{sOff}, s{sOff}, {opt['cls']*128}")
    e(f"v_lshlrev_b32 v{vT0}, 10, v{vL}"); e("s_mov_b32 exec_hi, 0x00ffffff")
    e(f"buffer_load_dword v{vXo}, v{vT0}, s[{sW2}:{sW2+3}], s{sOff} offen")
    m = 0xffffffff ^ (0x01010101 << opt['cls']); e(f"s_mov_b32 exec_lo, {m}"); e(f"s_mov_b32 exec_hi, {m}")
for s in range(opt['pfn']):
    e(f"buffer_load_dword v{vXo}, v{vWo}, s[{sW2}:{sW2+3}], s{sTmp} offen"); e(f"s_add_u32 s{sTmp}, s{sTmp}, 65536")
e("s_mov_b64 exec, -1"); setupw2()
for s in range(7): w2(s)
srd(sWS, 60, WSSZ); setupc(0)
e("s_waitcnt vmcnt(0)"); e("s_barrier"); e("s_barrier"); e("s_branch L_p2_0")
lab("L_comp")
def setup2():
    e(f"s_lshl_b32 s{sTmp2}, s{sMI}, 1"); e(f"s_add_u32 s{sTmp2}, s{sTmp2}, s{sMB}"); e(f"s_mul_i32 s{sTmp2}, s{sTmp2}, 112")
    e(f"s_mul_i32 s{sTmp}, s{sMT}, 448"); e(f"s_add_u32 s{sTmp}, s{sTmp}, s{sTmp2}"); e(f"s_lshl_b32 s{sTmp2}, s{sCnt}, 1")
    e(f"s_add_u32 s{sTmp}, s{sTmp}, s{sTmp2}"); e(f"s_add_u32 s{sTmp}, s{sTmp}, s{sKI}"); e(f"s_lshl_b32 s{sTmp}, s{sTmp}, 10")
    e(f"v_lshl_add_u32 v{vHs}, v{vL}, 4, s{sTmp}")
    setupc(1)
e("s_waitcnt lgkmcnt(0)")
srd(sWS, 60, WSSZ); srd(sD, 58, 256); srd(sO, 56, 131072)
stamp()
e(f"s_cmp_ge_u32 s{sI}, 28"); e("s_cbranch_scc1 L_hcp")
setup2()
e(f"v_lshrrev_b32 v{vT0}, 4, v{vL}"); e(f"v_lshlrev_b32 v{vRW}, 10, v{vT0}")
e(f"v_and_b32 v{vT0}, 12, v{vL}"); e(f"v_lshl_add_u32 v{vRW}, v{vT0}, 5, v{vRW}")
e(f"v_lshrrev_b32 v{vT0}, 3, v{vL}"); e(f"v_and_b32 v{vT0}, 3, v{vT0}"); e(f"s_lshl_b32 s{sTmp}, s{sKI}, 1")
e(f"v_xor_b32 v{vT0}, s{sTmp}, v{vT0}"); e(f"v_lshl_add_u32 v{vRW}, v{vT0}, 5, v{vRW}")
e(f"v_and_b32 v{vT1}, 3, v{vL}"); e(f"v_lshl_add_u32 v{vRW}, v{vT1}, 3, v{vRW}"); e(f"v_xor_b32 v{vRW+1}, 32, v{vRW}")
e(f"v_add_u32 v{vRW+2}, 0x10000, v{vRW}"); e(f"v_add_u32 v{vRW+3}, 0x10000, v{vRW+1}")
e(f"v_and_b32 v{vT0}, 15, v{vL}"); e(f"v_lshrrev_b32 v{vT1}, 4, v{vL}"); e(f"v_xor_b32 v{vT1}, v{vT0}, v{vT1}")
e(f"v_lshlrev_b32 v{vT0}, 8, v{vT0}"); e(f"v_lshl_add_u32 v{vRX}, v{vT1}, 4, v{vT0}")
e(f"s_lshl_b32 s{sTmp}, s{sMB}, 12"); e(f"s_add_u32 s{sTmp}, s{sTmp}, {XB}"); e(f"v_add_u32 v{vRX}, s{sTmp}, v{vRX}")
for s in range(1, 4): e(f"v_xor_b32 v{vRX+s}, {64*s}, v{vRX}")
for u in range(8):
    e("s_barrier")
    if u in (0, 3, 7): stamp()
    sl = u % 6
    def rd(s):
        d = vB + s*12
        e(f"ds_read_b128 v[{d}:{d+3}], v{vRX+s} offset:{u*8192}")
        for fb in range(2):
            for hf in range(2):
                r = d + 4 + fb*4 + 2*hf
                e(f"ds_read_b64_tr_b16 v[{r}:{r+1}], v{vRW+2*(sl>>2)+fb} offset:{(sl&3)*16384 + s*4096 + hf*512}")
    if u == 7 and opt['mo'] & 1:
        def rw(s, fb):
            for hf in range(2):
                r = vB + s*12 + 4 + fb*4 + 2*hf
                e(f"ds_read_b64_tr_b16 v[{r}:{r+1}], v{vRW+2*(sl>>2)+fb} offset:{(sl&3)*16384 + s*4096 + hf*512}")
        def m7(s, fb, w):
            d = vB + s*12; a = vACC + 4*fb
            e(f"s_waitcnt lgkmcnt({w})")
            e(f"v_mfma_f32_16x16x32_bf16 v[{a}:{a+3}], v[{d+4+4*fb}:{d+7+4*fb}], v[{d}:{d+3}], v[{a}:{a+3}]")
        for s in range(4):
            e(f"ds_read_b128 v[{vB+s*12}:{vB+s*12+3}], v{vRX+s} offset:{u*8192}"); rw(s, 0)
        for s in range(4): rw(s, 1); m7(s, 0, 11-s)
        P = 56; T = vTmp + 4
        e(f"s_cmp_lg_u32 s{sMT}, 0"); e("s_cbranch_scc0 L_gate")
        for s in range(4): m7(s, 1, 6-2*s)
        e("s_nop 7")
        for r in range(4): e(f"v_cvt_pk_bf16_f32 v{P+r}, v{vACC+2*r}, v{vACC+2*r+1}")
        e("s_branch L_up")
        lab("L_gate")
        m7(0, 1, 6); e("s_nop 5")
        for h in range(2):
            R2 = range(2*h, 2*h+2); R4 = range(4*h, 4*h+4)
            for r in R2: e(f"v_cvt_pk_bf16_f32 v{P+r}, v{vACC+2*r}, v{vACC+2*r+1}")
            for r in R2: e(f"v_lshlrev_b32 v{vACC+2*r}, 16, v{P+r}"); e(f"v_and_b32 v{vACC+2*r+1}, 0xffff0000, v{P+r}")
            for r in R4: e(f"v_mul_f32 v{T+r}, 0xbfb8aa3b, v{vACC+r}")
            if h == 0: m7(1, 1, 4)
            for r in R4: e(f"v_exp_f32 v{T+r}, v{T+r}")
            if h == 0: m7(2, 1, 2)
            for r in R4: e(f"v_add_f32 v{T+r}, 1.0, v{T+r}")
            if h == 0: m7(3, 1, 0)
            for r in R4: e(f"v_rcp_f32 v{T+r}, v{T+r}")
            for r in R4: e(f"v_mul_f32 v{vACC+r}, v{vACC+r}, v{T+r}")
            for r in R2: e(f"v_cvt_pk_bf16_f32 v{P+r}, v{vACC+2*r}, v{vACC+2*r+1}")
        lab("L_up")
        continue
    rd(0); rd(1); rd(2)
    for s in range(4):
        e(f"s_waitcnt lgkmcnt({[10,10,5,0][s]})")
        d = vB + s*12
        for fb in range(2):
            a = vACC + 4*fb
            cin = "0" if u == 0 and s == 0 else f"v[{a}:{a+3}]"
            e(f"v_mfma_f32_16x16x32_bf16 v[{a}:{a+3}], v[{d+4+4*fb}:{d+7+4*fb}], v[{d}:{d+3}], {cin}")
        if s == 0: rd(3)
    if u == opt['flu'] - 1: e(f"s_load_dwordx2 s[{sFl}:{sNo}], s[58:59], 0")
def pubflag(tag):
    if opt['bearly']: e("s_nop 1"); return
    e(f"s_cmp_ge_u32 s{sI}, 28"); e(f"s_cbranch_scc1 L_pf{tag}")
    e(f"buffer_store_dwordx4 v[56:59], v{vHs}, s[{sWS}:{sWS+3}], s94 offen sc1")
    e(f"buffer_store_dwordx2 v[60:61], v62, s[{sWS}:{sWS+3}], s95 offen sc1")
    lab(f"L_pf{tag}")
def flagwait(tag):
    e(f"s_cmp_ge_u32 s{sFl}, 32"); e(f"s_cbranch_scc1 L_fok{tag}")
    e(f"s_mov_b32 s{sCnt}, 0"); e(f"v_mov_b32 v{vW2o}, 0")
    lab(f"L_fl{tag}")
    e("s_sleep 8"); e(f"buffer_load_dwordx2 v[{vT0}:{vT1}], v{vW2o}, s[{sD}:{sD+3}], 0 offen sc1"); e("s_waitcnt vmcnt(0)")
    e(f"v_readfirstlane_b32 s{sFl}, v{vT0}"); e(f"v_readfirstlane_b32 s{sNo}, v{vT1}"); e(f"s_add_u32 s{sCnt}, s{sCnt}, 1")
    e(f"s_cmp_gt_u32 s{sCnt}, 20000"); e(f"s_cbranch_scc1 L_fok{tag}")
    e(f"s_cmp_lt_u32 s{sFl}, 32"); e(f"s_cbranch_scc1 L_fl{tag}")
    lab(f"L_fok{tag}")
flagwait(0)
P = 56; T = vTmp + 4
if not opt['mo'] & 1:
    e("s_nop 5")
    P = 56; T = vTmp + 4
    for r in range(4): e(f"v_cvt_pk_bf16_f32 v{P+r}, v{vACC+2*r}, v{vACC+2*r+1}")
    e(f"s_cmp_lg_u32 s{sMT}, 0"); e("s_cbranch_scc1 L_up")
    for r in range(4):
        e(f"v_lshlrev_b32 v{vACC+2*r}, 16, v{P+r}"); e(f"v_and_b32 v{vACC+2*r+1}, 0xffff0000, v{P+r}")
    for r in range(8): e(f"v_mul_f32 v{T+r}, 0xbfb8aa3b, v{vACC+r}")
    for r in range(8): e(f"v_exp_f32 v{T+r}, v{T+r}")
    for r in range(8): e(f"v_add_f32 v{T+r}, 1.0, v{T+r}")
    for r in range(8): e(f"v_rcp_f32 v{T+r}, v{T+r}")
    for r in range(8): e(f"v_mul_f32 v{vACC+r}, v{vACC+r}, v{T+r}")
    for r in range(4): e(f"v_cvt_pk_bf16_f32 v{P+r}, v{vACC+2*r}, v{vACC+2*r+1}")
    lab("L_up")
for r in range(4): e(f"v_min_u32 v{P+r}, -2, v{P+r}")
e(f"buffer_store_dwordx4 v[{P}:{P+3}], v{vHs}, s[{sWS}:{sWS+3}], 0 offen{'' if opt['loc'] else ' sc1'}")
stamp()
lab("L_nw")
e(f"v_mov_b32 v61, s{sNo}"); e("ds_write_b32 v23, v61"); e("v_mov_b32 v60, v59"); e(f"v_lshrrev_b32 v62, 1, v{vHs}"); e("v_mov_b32 v59, v61")
e("s_waitcnt lgkmcnt(0)"); e("s_barrier")
def hload(s0, n):
    for s in range(s0, n):
        for mt in range(2):
            d = (vU if mt else vH) + 4*s
            e(f"buffer_load_dwordx4 v[{d}:{d+3}], v{vHo}, s[{sWS}:{sWS+3}], {'s%d' % sU if mt else 0} offen offset:{s*1024} sc1")
    if n == 4 and opt['bearly']: e(f"buffer_store_dwordx4 v[56:59], v{vHs}, s[{sWS}:{sWS+3}], s94 offen sc1")
def mf(s, nb):
    a = vA2 + 4*nb; d = vB2 + (s*4+nb)*4
    cin = "0" if s == 0 else f"v[{a}:{a+3}]"
    e(f"v_mfma_f32_16x16x32_bf16 v[{a}:{a+3}], v[{d}:{d+3}], v[{vH+4*s}:{vH+4*s+3}], {cin}")
vPK = 144
assert (vTmp + 4) % 2 == 0 and vA2 % 2 == 0
def p2(role):
    n = 3 + role
    lab(f"L_p2_{role}")
    hload(0, n)
    if role: stamp()
    e(f"ds_read_b32 v{vRW}, v23")
    for s in range(n):
        for nb in range(4):
            for hf in range(2):
                d = vB2 + (s*4+nb)*4 + 2*hf
                e(f"ds_read_b64_tr_b16 v[{d}:{d+1}], v{vR2+nb+(4 if s == 0 and role else 0)} offset:{max(s-role, 0)*8192 + hf*2048}")
    e(f"s_mov_b32 s{sCnt}, 0"); e(f"s_mov_b32 s{sTmp}, 0xffff0000")
    for s in range(n):
        lab(f"L_h{role}{s}")
        e(f"s_waitcnt vmcnt({2*(n-1-s) + (role if opt['bearly'] else 0)})")
        g, u = vH+4*s, vU+4*s
        e(f"v_max3_u32 v{vT0}, v{g}, v{g+1}, v{g+2}"); e(f"v_max3_u32 v{vT1}, v{u}, v{u+1}, v{u+2}")
        e(f"v_max3_u32 v{vT0}, v{vT0}, v{g+3}, v{u+3}"); e(f"v_max_u32 v{vT0}, v{vT0}, v{vT1}")
        e(f"v_cmp_eq_u32 vcc, -1, v{vT0}"); e(f"s_cbranch_vccnz L_r{role}{s}")
        lab(f"L_g{role}{s}")
        if s == n-1 and role: stamp()
        for r in range(4):
            t = vTmp + 4 + 2*r
            if opt['mo'] & 2:
                w = vPK + 2*r
                e(f"v_lshlrev_b32 v{t}, 16, v{g+r}"); e(f"v_and_b32 v{t+1}, s{sTmp}, v{g+r}")
                e(f"v_lshlrev_b32 v{w}, 16, v{u+r}"); e(f"v_and_b32 v{w+1}, s{sTmp}, v{u+r}")
                e(f"v_pk_mul_f32 v[{t}:{t+1}], v[{t}:{t+1}], v[{w}:{w+1}]")
            elif opt['dot']:
                e(f"v_and_b32 v{t}, 0xffff, v{u+r}"); e(f"v_and_b32 v{t+1}, s{sTmp}, v{u+r}")
                e(f"v_dot2_f32_bf16 v{t}, v{g+r}, v{t}, 0"); e(f"v_dot2_f32_bf16 v{t+1}, v{g+r}, v{t+1}, 0")
            else:
                e(f"v_lshlrev_b32 v{t}, 16, v{g+r}"); e(f"v_lshlrev_b32 v{t+1}, 16, v{u+r}")
                e(f"v_and_b32 v{g+r}, s{sTmp}, v{g+r}"); e(f"v_and_b32 v{u+r}, s{sTmp}, v{u+r}")
                e(f"v_mul_f32 v{t}, v{t}, v{t+1}"); e(f"v_mul_f32 v{t+1}, v{g+r}, v{u+r}")
        for r in range(4): e(f"v_cvt_pk_bf16_f32 v{g+r}, v{vTmp+4+2*r}, v{vTmp+5+2*r}")
        e("s_waitcnt lgkmcnt(0)" if s == 0 else "s_nop 0"); e("s_nop 0")
        for nb in (2, 3, 0, 1): mf(s, nb)
    if role:
        pubflag("m")
        for r in range(4): e(f"s_mov_b32 s{52+r}, {0x07060500 + r}")
        e(f"s_movk_i32 s{sTmp}, 0x2000"); e("s_nop 0")
        for a in (2, 3): e(f"ds_write_b128 v{SW[0]}, v[{vA2+4*a}:{vA2+4*a+3}] offset:{(a-2)*3072}")
        e("s_waitcnt lgkmcnt(0)"); e("s_barrier")
        for k in range(6): e(f"ds_read_b128 v[{64+4*k}:{64+4*k+3}], v{vSc} offset:{1024*k}")
        for k in range(6):
            h = k // 3
            e(f"s_waitcnt lgkmcnt({5-k})")
            if opt['mo'] & 4:
                for r in (0, 2): e(f"v_pk_add_f32 v[{vA2+4*h+r}:{vA2+4*h+r+1}], v[{vA2+4*h+r}:{vA2+4*h+r+1}], v[{64+4*k+r}:{64+4*k+r+1}]")
            else:
                for r in range(4): e(f"v_add_f32 v{vA2+4*h+r}, v{vA2+4*h+r}, v{64+4*k+r}")
            if k % 3 == 2:
                for r in range(4): e(f"v_perm_b32 v{vA2+4*h+r}, v{vA2+4*h+r}, v{vRW}, s{52+r}")
                e(f"buffer_store_dwordx4 v[{vA2+4*h}:{vA2+4*h+3}], v{vPs}, s[{sWS}:{sWS+3}], {'s%d' % sTmp if h else 0} offen{[' sc1', ' sc0 sc1', ' sc1 nt'][opt['ps']]}")
        stamp()
        if opt['diag']:
            e(f"s_cmp_lg_u32 s{sWV}, 0"); e("s_cbranch_scc1 L_end"); e("s_waitcnt lgkmcnt(0)"); e("s_mov_b64 exec, 1")
            e(f"s_lshl_b32 s{sTmp}, s2, 6"); e(f"s_add_u32 s{sTmp}, s{sTmp}, {DOFF}"); e(f"v_mov_b32 v{vT1}, s{sTmp}")
            for k, sr in list(enumerate([sST+2*k for k in range(nst[0])]))[1:] + [(11, sCnt)]:
                e(f"v_mov_b32 v{vTmp+k}, s{sr}"); e(f"buffer_store_dword v{vTmp+k}, v{vT1}, s[{sWS}:{sWS+3}], 0 offen offset:{4*k}")
        e("s_endpgm")
    else:
        e(f"v_readfirstlane_b32 s{sNo}, v{vRW}"); e("s_nop 5")
        for a in (2, 3): e(f"ds_write_b128 v{SW[0]}, v[{vA2+4*a}:{vA2+4*a+3}] offset:{(a-2)*3072 + 1024}")
        for a in (0, 1): e(f"ds_write_b128 v{vSc}, v[{vA2+4*a}:{vA2+4*a+3}] offset:{a*3072 + 2048}")
        e("s_waitcnt lgkmcnt(0)"); e("s_barrier")
p2(1)
p2(0)
vP = 64; RD = opt['rdepth']
def pl(k):
    e(f"buffer_load_dwordx4 v[{vP+8*k}:{vP+8*k+3}], v16, s[{sWS}:{sWS+3}], 0 offen sc1")
    e(f"buffer_load_dwordx4 v[{vP+8*k+4}:{vP+8*k+7}], v16, s[{sWS}:{sWS+3}], s93 offen sc1")
for r in range(4): e(f"s_bfe_u32 s{52+r}, s{sNo}, {0x80000 + 8*r}")
e(f"s_mov_b32 s{sCnt}, 0")
for k in range(RD):
    if opt['rsl']: e(f"s_sleep {opt['rsl']}")
    pl(k)
def chk(w):
    e(f"s_waitcnt vmcnt({w})")
    for r in range(8): e(f"v_xor_b32 v{vTmp+r}, s{52+(r&3)}, v{vP+r}")
    e(f"v_or3_b32 v{vT0}, v{vTmp}, v{vTmp+1}, v{vTmp+2}"); e(f"v_or3_b32 v{vT1}, v{vTmp+3}, v{vTmp+4}, v{vTmp+5}")
    e(f"v_or3_b32 v{vT0}, v{vT0}, v{vTmp+6}, v{vTmp+7}"); e(f"v_or_b32 v{vT0}, v{vT0}, v{vT1}")
    e(f"v_and_b32 v{vT0}, 0xff, v{vT0}"); e(f"v_cmp_ne_u32 vcc, 0, v{vT0}"); e("s_cbranch_vccz L_pok")
if opt['mp']:
    chk(0)
    for k in range(opt['mp'] - 1): e("s_mov_b64 exec, vcc"); pl(0); e(f"s_sleep {opt['st']}")
    lab("L_pp")
    e("s_mov_b64 exec, vcc"); pl(0); e("s_mov_b64 exec, -1")
    chk(2*opt['mp'] - 2)
    e(f"s_add_u32 s{sCnt}, s{sCnt}, 1"); e(f"s_cmp_lt_u32 s{sCnt}, 20000"); e("s_cbranch_scc1 L_pp")
else:
    lab("L_pp")
    for k in range(RD):
        e(f"s_waitcnt vmcnt({2*RD-2})")
        for r in range(8): e(f"v_xor_b32 v{vTmp+r}, s{52+(r&3)}, v{vP+8*k+r}")
        e(f"v_or3_b32 v{vT0}, v{vTmp}, v{vTmp+1}, v{vTmp+2}"); e(f"v_or3_b32 v{vT1}, v{vTmp+3}, v{vTmp+4}, v{vTmp+5}")
        e(f"v_or3_b32 v{vT0}, v{vT0}, v{vTmp+6}, v{vTmp+7}"); e(f"v_or_b32 v{vT0}, v{vT0}, v{vT1}")
        e(f"v_and_b32 v{vT0}, 0xff, v{vT0}"); e(f"v_cmp_ne_u32 vcc, 0, v{vT0}"); e("s_cbranch_vccz L_pok")
        if opt['rs2']: e(f"s_sleep {opt['rs2']}")
        pl(k)
    e(f"s_add_u32 s{sCnt}, s{sCnt}, 1"); e(f"s_cmp_lt_u32 s{sCnt}, 20000"); e("s_cbranch_scc1 L_pp")
lab("L_pok")
stamp()
A = vTmp
for r in range(4): e(f"v_add_f32 v{A+r}, v{A+r}, v{A+4+r}")
e("s_nop 0")
e(f"v_permlane32_swap_b32 v{A}, v{A+2}"); e(f"v_permlane32_swap_b32 v{A+1}, v{A+3}")
e(f"v_add_f32 v{A}, v{A}, v{A+2}"); e(f"v_add_f32 v{A+1}, v{A+1}, v{A+3}")
e(f"v_mov_b32 v{A+2}, v{A}"); e(f"v_mov_b32 v{A+3}, v{A+1}"); e("s_nop 1")
e(f"v_permlane16_swap_b32 v{A}, v{A+2}"); e(f"v_permlane16_swap_b32 v{A+1}, v{A+3}")
e(f"v_add_f32 v{A}, v{A}, v{A+2}"); e(f"v_add_f32 v{A+1}, v{A+1}, v{A+3}")
e(f"v_cvt_pk_bf16_f32 v{A}, v{A}, v{A+1}")
e("s_mov_b32 exec_lo, 0xffff"); e("s_mov_b32 exec_hi, 0xffff")
e(f"buffer_store_dword v{A}, v17, s[{sO}:{sO+3}], 0 offen{['', ' sc1', ' nt'][opt['os']]}")
if opt['diag']: e(f"s_cmp_lg_u32 s{sWV}, 0"); e("s_cbranch_scc1 L_end")
g = open('gen.py').read()
exec(g[g.index("if opt['diag']:\n    e(\"s_waitcnt vmcnt(0)\"); stamp()"):g.index("hdr = open(")].replace("for k, s in enumerate(src):", "for k, s in [x for x in enumerate(src) if x[0] in (0, 9, 10, 12)]:"))
for role in range(2):
  n = 3 + role
  for s in range(n):
    lab(f"L_r{role}{s}")
    e(f"s_add_u32 s{sCnt}, s{sCnt}, 1"); e(f"s_cmp_gt_u32 s{sCnt}, 20000"); e(f"s_cbranch_scc1 L_g{role}{s}")
    e(f"s_mov_b32 s7, {s}"); e(f"s_cmp_ge_u32 s{sCnt}, {opt['slowat']}"); e(f"s_cbranch_scc1 L_slow{role}")
    lab(f"L_rr{role}{s}")
    if opt['sleep']: e(f"s_sleep {opt['sleep']}")
    hload(s, n); e(f"s_branch L_h{role}{s}")
  lab(f"L_slow{role}")
  if role: pubflag("s")
  e(f"v_lshrrev_b32 v63, 1, v{vHo}"); e("s_waitcnt lgkmcnt(0)")
  lab(f"L_sl1{role}")
  e("s_sleep 8")
  for s in range(n):
    for mt in range(2):
      d = (vU if mt else vH) + 4*s; t = 128 + 4*s + 2*mt
      e(f"buffer_load_dwordx4 v[{d}:{d+3}], v{vHo}, s[{sWS}:{sWS+3}], s{94+2*mt} offen offset:{s*1024} sc1")
      e(f"buffer_load_dwordx2 v[{t}:{t+1}], v63, s[{sWS}:{sWS+3}], s{95+2*mt} offen offset:{s*512} sc1")
  e("s_waitcnt vmcnt(0)"); e(f"v_mov_b32 v{vT0}, 0")
  for s in range(n):
    for mt in range(2):
      d = (vU if mt else vH) + 4*s; t = 128 + 4*s + 2*mt
      e(f"v_xor_b32 v{d+3}, v{d+3}, v{vRW}"); e(f"v_xor_b32 v{t+1}, v{t+1}, v{vRW}"); e(f"v_or3_b32 v{vT0}, v{vT0}, v{d+3}, v{t+1}"); e(f"v_mov_b32 v{d+3}, v{t}")
  e(f"s_add_u32 s{sCnt}, s{sCnt}, 1"); e(f"s_cmp_gt_u32 s{sCnt}, 20000"); e(f"s_cbranch_scc1 L_sl2{role}")
  e(f"v_cmp_ne_u32 vcc, 0, v{vT0}"); e(f"s_cbranch_vccnz L_sl1{role}")
  lab(f"L_sl2{role}")
  for s in range(n-1): e(f"s_cmp_eq_u32 s7, {s}"); e(f"s_cbranch_scc1 L_h{role}{s}")
  e(f"s_branch L_h{role}{n-1}")
lab("L_hcp")
nst[0] = 2
e("s_cmp_lg_u32 s2, 224"); e("s_cbranch_scc1 L_hne")
e(f"s_add_u32 s46, s60, {EOFF}"); e("s_addc_u32 s47, s61, 0"); e(f"s_load_dword s{sNo}, s[46:47], 0")
lab("L_hne")
for r in range(4): e(f"v_mov_b32 v{vTmp+r}, -1")
e(f"s_sub_u32 s{sTmp}, s2, 224"); e(f"s_lshl_b32 s{sTmp}, s{sTmp}, 2"); e(f"s_add_u32 s{sTmp2}, s{sTmp}, s{sWV}")
e(f"s_mul_i32 s{sTmp}, s{sTmp2}, 7168"); e(f"v_lshl_add_u32 v{vWo}, v{vL}, 4, s{sTmp}")
for k in range(7):
    if k % 4 == 0: e(f"s_movk_i32 s{sTmp}, {k*1024}")
    e(f"buffer_store_dwordx4 v[{vTmp}:{vTmp+3}], v{vWo}, s[{sWS}:{sWS+3}], s{sTmp} offen offset:{(k%4)*1024} sc1")
e("s_mov_b64 exec, 1"); e(f"v_mov_b32 v{vT1}, 0"); e(f"ds_write_b32 v{vT1}, v{vT1}")
e("s_waitcnt lgkmcnt(0)")
e(f"s_cmp_lg_u32 s{sTmp2}, 0"); e("s_cbranch_scc1 L_hc0")
e(f"s_add_u32 s{sNo}, s{sNo}, 1"); e(f"v_mov_b32 v{vT0}, s{sNo}"); e(f"s_mov_b32 s{sTmp}, {EOFF}")
e(f"buffer_store_dword v{vT0}, v{vT1}, s[{sD}:{sD+3}], 0 offen offset:4 sc1")
e(f"buffer_store_dword v{vT0}, v{vT1}, s[{sWS}:{sWS+3}], s{sTmp} offen sc1")
lab("L_hc0")
e("s_barrier"); e(f"v_mov_b32 v{vT0}, 1")
e("s_waitcnt vmcnt(0)"); e(f"ds_add_rtn_u32 v{vT0}, v{vT1}, v{vT0}"); e("s_waitcnt lgkmcnt(0)")
e(f"v_readfirstlane_b32 s{sTmp}, v{vT0}"); e("s_mov_b64 exec, -1")
e(f"s_cmp_lg_u32 s{sTmp}, 3"); e("s_cbranch_scc1 L_hc2")
e(f"s_mov_b32 s{sFl}, 1"); e(f"s_atomic_add s{sFl}, s[58:59], 0 glc"); e("s_waitcnt lgkmcnt(0)")
lab("L_hc2")
stamp(); setup2(); stamp()
e("s_barrier"); stamp()
e(f"s_load_dwordx2 s[{sFl}:{sNo}], s[58:59], 0"); e("s_waitcnt lgkmcnt(0)")
flagwait(1); stamp()
e("s_branch L_nw")
exec(g[g.index("hdr = open("):].replace("block=(256,1,1)", "block=(512,1,1)"))

if opt['vg']:
    import re
    s_ = open(out).read().replace("next_free_vgpr 256", "next_free_vgpr 200").replace("accum_offset 256", "accum_offset 200")
    mx = max([int(m) for m in re.findall(r'\bv\[\d+:(\d+)\]', s_)] + [int(m) for m in re.findall(r'\bv(\d+)\b', s_)])
    assert mx < 200, mx
    open(out, 'w').write(s_)
```
